```python
import torch

def _softmax(x, axis=-1):
    return torch.softmax(x, dim=axis)
def _gelu(x):
    return torch.nn.functional.gelu(x, approximate="tanh")
def _silu(x):
    return torch.nn.functional.silu(x)
def _sigmoid(x):
    return torch.sigmoid(x)
def _layernorm(x, axis=-1, eps=1e-5):
    m = x.mean(dim=axis, keepdim=True)
    v = x.var(dim=axis, keepdim=True, unbiased=False)
    return (x - m) / torch.sqrt(v + eps)
def _scatter_add(tgt, idx, src, axis=0):
    return tgt.clone().index_add_(axis, idx, src)
def _segment_sum(src, seg, n):
    out = torch.zeros((n,) + src.shape[1:], dtype=src.dtype)
    return out.index_add_(0, seg, src)
def _pad(x, pw):
    flat = tuple(v for pair in reversed(pw) for v in pair)
    return torch.nn.functional.pad(x, flat)

kernel_name = 'standalone__gqa_softmax__sampling'

def setup_inputs():

    _w = (lambda a: (lambda t: t.to(torch.bfloat16) if t.is_floating_point() else t)(torch.as_tensor(a)))
    B, Hq, Hkv, Sq, Sk, D = 8, 32, 16, 16, 8192, 128
    return {
        "q": _w((lambda *s: torch.randn(*s, dtype=torch.bfloat16) * 0.8)(B, Hq, Sq, D)),
        "k": _w((lambda *s: torch.randn(*s, dtype=torch.bfloat16) * 0.8)(B, Hkv, Sk, D)),
        "v": _w((lambda *s: torch.randn(*s, dtype=torch.bfloat16) * 0.05)(B, Hkv, Sk, D)),
    }

def reference(q, k, v):
    B, Hq, Sq, D = q.shape
    Hkv = k.shape[1]
    rep = Hq // Hkv
    k = (lambda x, n, axis: torch.repeat_interleave(x, n, dim=axis))(k, rep, axis=1)
    v = (lambda x, n, axis: torch.repeat_interleave(x, n, dim=axis))(v, rep, axis=1)
    scale = D ** -0.5
    scores = torch.einsum("bhqd,bhkd->bhqk", q, k) * scale
    p = _softmax(scores, axis=-1)
    return torch.einsum("bhqk,bhkd->bhqd", p, v)
```

```python
import sys, struct, math
KN = "standalone__gqa_softmax__sampling_kernel"
HEADER = """; Kernarg layout for this problem (48 bytes, ptrs only, base s[0:1]):
"""
def f2u(f): return struct.unpack('<I', struct.pack('<f', f))[0]

def gen(path, D=2, flags='nt', pairmap='adj', skip=0):
    NW = 4; NWG = 256
    o = []; A = o.append
    LDS_O = 0; LDS_ST = 65536; LDS_FLAG = 65536 + 2048
    lds = 65536 + 2048 + 64
    A(HEADER + f"; @launch grid=({NWG},1,1) block=({NW*64},1,1) lds={lds}")
    A(f'.amdgcn_target "amdgcn-amd-amdhsa--gfx950"\n.text\n.globl {KN}\n.p2align 8\n.type {KN},@function\n{KN}:')
    vLane, vKoff, vVoff, vQoff = 0, 1, 2, 3
    vMp, vT0, vT1, vAl = 4, 5, 6, 7
    vM = [8, 9]; vA = [10, 12]; vL = [14, 15]
    vS = 16
    vP = 32
    vVT = 40
    vO = 72
    vV = 136
    nv = vV + 32 * D
    aQ = 0; aK = 32
    na = aK + 32 * D
    S = lambda h, T, r=0: vS + (h * 2 + T) * 4 + r
    P = lambda h, u=0: vP + h * 4 + u
    VT = lambda j, u=0: vVT + j * 4 + u
    O = lambda h, j, r=0: vO + (h * 8 + j) * 4 + r
    Vb = lambda b, T, i, w=0: vV + b * 32 + (T * 4 + i) * 4 + w
    Kb = lambda b, T, s: aK + b * 32 + (T * 4 + s) * 4
    Q = lambda h, s: aQ + (h * 4 + s) * 4
    vr = lambda r, n=4: f"v[{r}:{r+n-1}]"
    ar = lambda r, n=4: f"a[{r}:{r+n-1}]"
    sK, sV, sQ, sOut, sWs, sDbg = 's[16:19]', 's[20:23]', 's[24:27]', 's[28:31]', 's[32:35]', 's[36:39]'
    A(f"s_cmp_ge_u32 s2, {NWG}\ns_cbranch_scc1 L_end")
    A("s_load_dwordx8 s[4:11], s[0:1], 0\ns_load_dwordx4 s[12:15], s[0:1], 32")
    A("v_lshrrev_b32 v1, 6, v0\nv_and_b32 v0, 63, v0")
    A("v_and_b32 v4, 15, v0            ; m / n index")
    A("v_readfirstlane_b32 s40, v1")
    A("v_lshrrev_b32 v5, 4, v0         ; g")
    A("v_lshlrev_b32 v5, 4, v5         ; g*16")
    A("v_lshl_add_u32 v3, v4, 8, v5    ; qoff = n*256 + g*16")
    A("v_and_b32 v6, 3, v4\nv_lshlrev_b32 v6, 2, v6\nv_lshrrev_b32 v7, 2, v4\nv_add_u32 v6, v6, v7   ; row = 4*(m&3) + (m>>2)")
    A("v_lshl_add_u32 v1, v6, 8, v5    ; koff")
    A("v_lshlrev_b32 v2, 4, v0")
    if pairmap == 'adj':
        A("s_lshr_b32 s41, s2, 1\ns_and_b32 s42, s2, 1")
    else:
        A("s_and_b32 s41, s2, 127\ns_lshr_b32 s42, s2, 7")
    A("s_lshl_b32 s43, s42, 2\ns_add_u32 s43, s43, s40      ; widx")
    A("s_lshl_b32 s44, s43, 12      ; K soffset\ns_mov_b32 s45, s44")
    A("s_lshl_b32 s46, s41, 21")
    A("s_mov_b32 s18, 0x200000\ns_mov_b32 s19, 0x20000\ns_mov_b32 s22, 0x200000\ns_mov_b32 s23, 0x20000")
    A("s_mov_b32 s26, 0x100000\ns_mov_b32 s27, 0x20000")
    A("s_lshl_b32 s51, s41, 13")
    A("s_add_u32 s52, s51, 4096")
    A("s_waitcnt lgkmcnt(0)")
    A("s_add_u32 s16, s6, s46\ns_addc_u32 s17, s7, 0\ns_add_u32 s20, s8, s46\ns_addc_u32 s21, s9, 0")
    A("s_mov_b32 s24, s4\ns_mov_b32 s25, s5")
    def issueK(b):
        A("s_add_u32 s46, s44, 0x8000")
        for T in range(2):
            for s in range(4):
                A(f"buffer_load_dwordx4 {ar(Kb(b,T,s))}, v{vKoff}, {sK}, {'s44' if T==0 else 's46'} offen offset:{s*64} {flags}")
        A("s_add_u32 s44, s44, 0x10000")
    def issueV(b):
        A("s_add_u32 s46, s45, 0x8000")
        for T in range(2):
            for i in range(4):
                A(f"buffer_load_dwordx4 {vr(Vb(b,T,i))}, v{vVoff}, {sV}, {'s45' if T==0 else 's46'} offen offset:{i*1024} {flags}")
        A("s_add_u32 s45, s45, 0x10000")
    issueK(0); issueV(0)
    for h in range(2):
        for s in range(4):
            A(f"buffer_load_dwordx4 {ar(Q(h,s))}, v{vQoff}, {sQ}, {'s51' if h==0 else 's52'} offen offset:{s*64}")
    for b in range(1, D):
        issueK(b); issueV(b)
    A("s_mov_b32 s28, s10\ns_mov_b32 s29, s11\ns_mov_b32 s30, 0x100000\ns_mov_b32 s31, 0x20000")
    A("s_mov_b32 s32, s14\ns_mov_b32 s33, s15\ns_mov_b32 s34, 0x800000\ns_mov_b32 s35, 0x20000")
    A("s_mov_b32 s36, s12\ns_mov_b32 s37, s13\ns_mov_b32 s38, 256\ns_mov_b32 s39, 0x20000")
    c = math.log2(math.e) / math.sqrt(128.0)
    A(f"s_mov_b32 s48, 0x{f2u(c):08x}     ; log2(e)/sqrt(128)")
    A("s_mov_b32 s49, 0x05040100\ns_mov_b32 s50, 0x07060302")
    A(f"v_mov_b32 v{vMp}, 0xff800000")
    A(f"v_mov_b32 v{vL[0]}, 0\nv_mov_b32 v{vL[1]}, 0")
    for r in range(64): A(f"v_mov_b32 v{vO+r}, 0")
    ntile = 32
    assert ntile % D == 0 or True
    A(f"s_mov_b32 s47, {ntile}")
    A(f"s_waitcnt vmcnt({16*(D-1)})")
    A(".p2align 6\nL_loop:")
    W = 8 + 16 * (D - 1)
    def tile(b):
        A(f"s_waitcnt vmcnt({W})")
        for T in range(2):
            for s in range(4):
                for h in range(2):
                    cin = '0' if s == 0 else vr(S(h, T))
                    A(f"v_mfma_f32_16x16x32_bf16 {vr(S(h,T))}, {ar(Kb(b,T,s))}, {ar(Q(h,s))}, {cin}")
        issueK(b)
        A(f"s_waitcnt vmcnt({W})")
        for j in range(8):
            for u in range(4):
                T, x, w = u >> 1, u & 1, j >> 1
                A(f"v_perm_b32 v{VT(j,u)}, v{Vb(b,T,2*x+1,w)}, v{Vb(b,T,2*x,w)}, {'s49' if j%2==0 else 's50'}")
        issueV(b)
        t = [vT0, vT1]
        for h in range(2):
            A(f"v_max3_f32 v{t[h]}, v{S(h,0,0)}, v{S(h,0,1)}, v{S(h,0,2)}")
        for h in range(2):
            A(f"v_max3_f32 v{t[h]}, v{t[h]}, v{S(h,0,3)}, v{S(h,1,0)}")
        for h in range(2):
            A(f"v_max3_f32 v{t[h]}, v{t[h]}, v{S(h,1,1)}, v{S(h,1,2)}")
        for h in range(2):
            A(f"v_max_f32 v{t[h]}, v{t[h]}, v{S(h,1,3)}")
        A("s_nop 1")
        A(f"v_permlane32_swap_b32 v{vT0}, v{vT1}")
        A("s_nop 1")
        A(f"v_max_f32 v{vT0}, v{vT0}, v{vT1}")
        A(f"v_mov_b32 v{vT1}, v{vT0}")
        A("s_nop 1")
        A(f"v_permlane16_swap_b32 v{vT0}, v{vT1}")
        A("s_nop 1")
        A(f"v_max_f32 v{vT0}, v{vT0}, v{vT1}")
        A(f"v_mul_f32 v{vT0}, s48, v{vT0}")
        A(f"v_max_f32 v{vM[0]}, v{vMp}, v{vT0}")
        A(f"v_sub_f32 v{vT1}, v{vMp}, v{vM[0]}")
        A(f"v_exp_f32 v{vA[0]}, v{vT1}")
        A(f"v_mov_b32 v{vMp}, v{vM[0]}")
        A(f"v_mov_b32 v{vM[1]}, v{vM[0]}")
        A(f"v_mov_b32 v{vA[1]}, v{vA[0]}")
        A("s_nop 0")
        A(f"v_permlane32_swap_b32 v{vM[0]}, v{vM[1]}")
        A(f"v_permlane32_swap_b32 v{vA[0]}, v{vA[1]}")
        A("s_nop 1")
        for h in range(2):
            for T in range(2):
                for r in range(4):
                    A(f"v_fma_f32 v{S(h,T,r)}, v{S(h,T,r)}, s48, -v{vM[h]}")
        for h in range(2):
            for T in range(2):
                for r in range(4):
                    A(f"v_exp_f32 v{S(h,T,r)}, v{S(h,T,r)}")
        for h in range(2):
            for j in range(8):
                for r in (0, 2):
                    A(f"v_pk_mul_f32 {vr(O(h,j,r),2)}, {vr(O(h,j,r),2)}, {vr(vA[h],2)} op_sel_hi:[1,0]")
        for h in range(2):
            for u in range(4):
                T, x = u >> 1, u & 1
                A(f"v_cvt_pk_bf16_f32 v{P(h,u)}, v{S(h,T,2*x)}, v{S(h,T,2*x+1)}")
        for h in range(2):
            A(f"v_fma_f32 v{vL[h]}, v{vL[h]}, v{vA[h]}, v{S(h,0,0)}")
        for idx in range(1, 8):
            for h in range(2):
                A(f"v_add_f32 v{vL[h]}, v{vL[h]}, v{S(h,idx>>2,idx&3)}")
        for j in range(8):
            for h in range(2):
                A(f"v_mfma_f32_16x16x32_bf16 {vr(O(h,j))}, {vr(VT(j))}, {vr(P(h))}, {vr(O(h,j))}")
    for b in range(D):
        tile(b)
        A("s_sub_u32 s47, s47, 1\ns_cmp_eq_u32 s47, 0")
        if b < D - 1: A("s_cbranch_scc1 L_done")
        else: A("s_cbranch_scc0 L_loop")
    A("L_done:")
    A(f"v_permlane32_swap_b32 v{vL[0]}, v{vL[1]}")
    A("s_nop 1")
    A(f"v_add_f32 v{vT0}, v{vL[0]}, v{vL[1]}")
    A(f"v_mov_b32 v{vT1}, v{vT0}")
    A("s_nop 1")
    A(f"v_permlane16_swap_b32 v{vT0}, v{vT1}")
    A("s_nop 1")
    A(f"v_add_f32 v{vT0}, v{vT0}, v{vT1}")
    A(f"s_lshl_b32 s46, s40, 9\ns_add_u32 s46, s46, {LDS_ST}")
    A(f"v_lshl_add_u32 v{vT1}, v0, 3, s46")
    A(f"ds_write_b64 v{vT1}, v[{vMp}:{vMp+1}]")
    A(f"s_lshl_b32 s46, s40, 14")
    A(f"v_add_u32 v{vT1}, s46, v{vVoff}       ; w*16384 + lane*16")
    for qd in range(16):
        A(f"ds_write_b128 v{vT1}, {vr(vO+4*qd)} offset:{qd*1024}")
    A("s_lshr_b32 s53, s40, 1       ; h\ns_and_b32 s54, s40, 1     ; jh")
    A(f"s_lshl_b32 s46, s53, 8\ns_add_u32 s46, s46, {LDS_ST}")
    A(f"v_and_b32 v{vAl}, 15, v0\nv_lshl_add_u32 v{vAl}, v{vAl}, 3, s46")
    A(f"s_lshl_b32 s46, s40, 12\nv_add_u32 v{vT1}, s46, v{vVoff}    ; w'*4096 + lane*16")
    A("s_waitcnt vmcnt(0) lgkmcnt(0)\ns_barrier")
    vSt = 16
    vX = 136
    for w in range(4):
        A(f"ds_read_b64 v[{vSt+2*w}:{vSt+2*w+1}], v{vAl} offset:{w*512}")
    for w in range(4):
        for i in range(4):
            A(f"ds_read_b128 {vr(vX+(w*4+i)*4)}, v{vT1} offset:{w*16384+i*1024}")
    A("s_waitcnt lgkmcnt(15)")
    vMx = 24; vLs = 25; vF = 26
    A(f"v_max3_f32 v{vMx}, v{vSt}, v{vSt+2}, v{vSt+4}")
    A(f"v_max_f32 v{vMx}, v{vMx}, v{vSt+6}")
    for w in range(4): A(f"v_sub_f32 v{vF+w}, v{vSt+2*w}, v{vMx}")
    for w in range(4): A(f"v_exp_f32 v{vF+w}, v{vF+w}")
    A("s_nop 0")
    A(f"v_mul_f32 v{vLs}, v{vF}, v{vSt+1}")
    for w in range(1, 4): A(f"v_fmac_f32 v{vLs}, v{vF+w}, v{vSt+2*w+1}")
    vAcc = 32
    A("s_waitcnt lgkmcnt(12)")
    for i in range(16): A(f"v_mul_f32 v{vAcc+i}, v{vF}, v{vX+i}")
    for w in range(1, 4):
        A(f"s_waitcnt lgkmcnt({12-4*w})")
        for i in range(16): A(f"v_fmac_f32 v{vAcc+i}, v{vF+w}, v{vX+w*16+i}")
    A("s_mul_i32 s46, s2, 20480\ns_mul_i32 s55, s40, 5120\ns_add_u32 s46, s46, s55")
    for i in range(4):
        A(f"buffer_store_dwordx4 {vr(vAcc+4*i)}, v{vVoff}, {sWs}, s46 offen offset:{i*1024} sc1")
    A(f"v_lshlrev_b32 v{vT0}, 3, v0")
    A("s_add_u32 s56, s46, 4096")
    A(f"buffer_store_dwordx2 v[{vMx}:{vMx+1}], v{vT0}, {sWs}, s56 offen sc1")
    A(f"s_xor_b32 s57, s2, {1 if pairmap=='adj' else 128}\ns_mul_i32 s57, s57, 20480\ns_add_u32 s57, s57, s55\ns_add_u32 s58, s57, 4096")
    A(f"v_mov_b32 v{vAl}, {LDS_FLAG}")
    A("s_waitcnt vmcnt(0)\ns_barrier")
    A("s_cmp_lg_u32 s40, 0\ns_cbranch_scc1 L_noatomic")
    A("s_and_b32 s59, s41, 1\ns_lshl_b32 s59, s59, 4      ; shift\ns_lshl_b32 s60, 1, s59\ns_lshr_b32 s61, s41, 1\ns_lshl_b32 s61, s61, 2")
    A(f"v_mov_b32 v8, s60\nv_mov_b32 v9, s61")
    A("s_mov_b64 exec, 1")
    A(f"buffer_atomic_add v8, v9, {sDbg}, 0 offen sc0")
    A("s_waitcnt vmcnt(0)")
    A(f"v_lshrrev_b32 v8, s59, v8\nv_and_b32 v8, 0xffff, v8")
    A(f"ds_write_b32 v{vAl}, v8")
    A("s_waitcnt lgkmcnt(0)")
    A("s_mov_b64 exec, -1")
    A("L_noatomic:\ns_barrier")
    A(f"ds_read_b32 v8, v{vAl}")
    A("s_waitcnt lgkmcnt(0)")
    A("v_readfirstlane_b32 s59, v8\ns_nop 3")
    A("s_cmp_eq_u32 s59, 0\ns_cbranch_scc1 L_end")
    vY = 48
    A(f"buffer_load_dwordx2 v[8:9], v{vT0}, {sWs}, s58 offen sc1")
    for i in range(4):
        A(f"buffer_load_dwordx4 {vr(vY+4*i)}, v{vVoff}, {sWs}, s57 offen offset:{i*1024} sc1")
    A("s_lshl_b32 s46, s53, 12\ns_add_u32 s46, s46, s51\ns_lshl_b32 s55, s54, 3\ns_add_u32 s46, s46, s55")
    A("v_and_b32 v10, 15, v0\nv_lshlrev_b32 v10, 8, v10\nv_lshrrev_b32 v11, 4, v0\nv_lshl_add_u32 v10, v11, 6, v10")
    A("s_waitcnt vmcnt(4)")
    A(f"v_max_f32 v12, v{vMx}, v8")
    A(f"v_sub_f32 v13, v{vMx}, v12\nv_sub_f32 v14, v8, v12")
    A("v_exp_f32 v13, v13\nv_exp_f32 v14, v14\ns_nop 0")
    A(f"v_mul_f32 v15, v13, v{vLs}\nv_mul_f32 v16, v14, v9\nv_add_f32 v15, v15, v16")
    A("v_rcp_f32 v15, v15\ns_nop 0")
    A("v_mul_f32 v13, v13, v15\nv_mul_f32 v14, v14, v15")
    for i in range(16): A(f"v_mul_f32 v{vAcc+i}, v13, v{vAcc+i}")
    A("s_waitcnt vmcnt(0)")
    for i in range(16): A(f"v_mul_f32 v{vY+i}, v14, v{vY+i}")
    for i in range(16): A(f"v_add_f32 v{vAcc+i}, v{vAcc+i}, v{vY+i}")
    for r in range(4):
        A(f"v_cvt_pk_bf16_f32 v{64+2*r}, v{vAcc+0*4+r}, v{vAcc+1*4+r}")
        A(f"v_cvt_pk_bf16_f32 v{65+2*r}, v{vAcc+2*4+r}, v{vAcc+3*4+r}")
    for r in range(4):
        A(f"buffer_store_dwordx2 v[{64+2*r}:{65+2*r}], v10, {sOut}, s46 offen offset:{r*16}")
    A("L_end:\ns_endpgm")
    nvv = max(nv, 200)
    acc_off = (nvv + 3) // 4 * 4
    A(f""".section .rodata,"a"
.p2align 6
.amdhsa_kernel {KN}
  .amdhsa_next_free_vgpr {acc_off + na}
  .amdhsa_next_free_sgpr 64
  .amdhsa_accum_offset {acc_off}
  .amdhsa_group_segment_fixed_size 0
  .amdhsa_kernarg_size 48
  .amdhsa_user_sgpr_count 2
  .amdhsa_user_sgpr_kernarg_segment_ptr 1
  .amdhsa_system_sgpr_workgroup_id_x 1
.end_amdhsa_kernel""")
    open(path, 'w').write("\n".join(o) + "\n")
if __name__ == "__main__":
    kw = {}
    for a in sys.argv[2:]:
        k, v = a.split('=')
        kw[k] = int(v) if v.lstrip('-').isdigit() else v.replace('+', ' ')
    gen(sys.argv[1], **kw)
```

```python
import re
TRANS = ('v_exp_f32','v_log_f32','v_rcp_f32','v_rsq_f32','v_sqrt_f32','v_sin_f32','v_cos_f32')
def regs(op):
    op = op.strip().lstrip('-')
    if op.startswith('abs('): op = op[4:-1]
    op = op.strip('|')
    m = re.fullmatch(r'([vas])(\d+)', op)
    if m: return [(m.group(1), int(m.group(2)))]
    m = re.fullmatch(r'([vas])\[(\d+):(\d+)\]', op)
    if m: return [(m.group(1), i) for i in range(int(m.group(2)), int(m.group(3)) + 1)]
    if op in ('m0',): return [('m', 0)]
    if op == 'vcc': return [('vcc', 0)]
    if op == 'exec': return [('exec', 0)]
    return []
class I:
    def __init__(self, text):
        self.text = text
        t = text.split(';')[0].strip()
        self.label = t.endswith(':') or t.startswith('.') or not t
        self.op = ''; self.w = []; self.r = []; self.kind = 'none'; self.srcC = []; self.srcAB = []; self.states = 0; self.data = []
        if self.label: return
        parts = t.split(None, 1)
        self.op = op = parts[0]
        args = parts[1] if len(parts) > 1 else ''
        ops = [a.strip() for a in re.split(r',(?![^\[]*\])', args)] if args else []
        if ops:
            last = ops[-1].split()
            self.mods = last[1:]
            ops[-1] = last[0] if last else ''
        else: self.mods = []
        self.states = 1
        if op == 's_nop': self.states = int(ops[0], 0) + 1; self.kind = 'salu'; return
        R = lambda l: [x for o in l for x in regs(o)]
        if op.startswith('v_mfma'):
            self.kind = 'mfma'; self.w = regs(ops[0]); self.srcAB = R(ops[1:3]); self.srcC = regs(ops[3]); self.r = self.srcAB + self.srcC
            self.passes = 4 if '16x16x32' in op else 8
        elif op.startswith('v_'):
            self.kind = 'valu'
            if 'permlane' in op and 'swap' in op: self.w = R(ops[:2]); self.r = R(ops[:2])
            else:
                self.w = regs(ops[0]); self.r = R(ops[1:])
                if op.startswith('v_fmac') or op.startswith('v_pk_fmac'): self.r += self.w
                if op.startswith('v_cndmask') and len(ops) == 3: self.r.append(('vcc', 0))
        elif op.startswith('buffer_') or op.startswith('global_'):
            self.kind = 'vmem'
            if 'lds' in self.mods: self.r = R(ops) + [('m', 0)]; self.dma = True
            elif 'store' in op: self.r = R(ops); self.data = regs(ops[0]) if op.startswith('buffer_') else regs(ops[1])
            elif 'atomic' in op: self.r = R(ops); self.w = regs(ops[0]) if 'sc0' in self.mods else []
            else: self.w = regs(ops[0]); self.r = R(ops[1:])
        elif op.startswith('ds_'):
            self.kind = 'ds'
            if 'read' in op: self.w = regs(ops[0]); self.r = R(ops[1:])
            else: self.r = R(ops)
        elif op.startswith('s_'):
            self.kind = 'salu'
            if op.startswith(('s_cmp', 's_cbranch', 's_branch', 's_waitcnt', 's_barrier', 's_endpgm', 's_setprio', 's_bitcmp', 's_sleep')): self.r = R(ops)
            else: self.w = regs(ops[0]) if ops else []; self.r = R(ops[1:])
def need(p, c):
    n = 0
    pw = set(p.w);
    if p.kind == 'mfma':
        big = {4: 8, 8: 12}[p.passes]
        if c.kind == 'mfma':
            if pw & set(c.srcAB): n = max(n, big)
            if pw & set(c.srcC) and p.w != c.srcC: n = max(n, {4: 6, 8: 10}[p.passes])
            elif pw & set(c.w) and p.w != c.srcC: n = max(n, {4: 6, 8: 10}[p.passes])
        elif c.kind in ('valu', 'vmem', 'ds'):
            if pw & (set(c.r) | set(c.w)): n = max(n, big)
        if c.kind == 'valu' and set(p.srcC) & set(c.w): n = max(n, {4: 3, 8: 7}[p.passes])
    if p.kind == 'valu':
        vw = {x for x in pw if x[0] in 'va'}
        sw = {x for x in pw if x[0] in ('s', 'vcc')}
        if c.kind == 'mfma' and vw & set(c.r): n = max(n, 2)
        if c.kind == 'valu':
            if 'permlane' in c.op and vw & set(c.r): n = max(n, 2)
            if 'dpp' in c.text and vw & set(c.r): n = max(n, 2)
            if c.op in ('v_readfirstlane_b32', 'v_readlane_b32') and vw & set(c.r): n = max(n, 1)
            if p.op in TRANS and c.op not in TRANS and vw & set(c.r): n = max(n, 1)
            if p.op in TRANS and c.op in TRANS and vw & set(c.r): n = max(n, 1)
            if sw & set(c.r): n = max(n, 2)
            if 'op_sel' in p.text and vw & (set(c.r)): n = max(n, 1)
        if c.kind == 'vmem' and sw & set(c.r): n = max(n, 5)
        if c.kind == 'salu' and sw & set(c.r): n = max(n, 2)
        if ('exec', 0) in pw: n = max(n, 5)
    if p.kind == 'salu' and ('m', 0) in pw and c.kind == 'vmem' and ('m', 0) in c.r: n = max(n, 1)
    if p.kind == 'vmem' and len(p.data) >= 3 and set(p.data) & set(c.w): n = max(n, 2)
    return n
def fix(lines):
    out = []; hist = []
    added = 0
    for ln in lines:
        for t in ln.split('\n'):
            c = I(t)
            if c.label: out.append(t); continue
            req = 0; dist = 0
            for p in reversed(hist):
                if dist >= 20: break
                k = need(p, c)
                if k > dist: req = max(req, k - dist)
                dist += p.states
            while req > 0:
                k = min(req, 16)
                nop = I(f"s_nop {k-1}"); out.append(nop.text); hist.append(nop); req -= k; added += k
            out.append(t); hist.append(c)
            if len(hist) > 40: hist = hist[-30:]
    return out, added
```

```python
import sys, struct, math
from hz import fix
KN = "standalone__gqa_softmax__sampling_kernel"
HEADER = """; Kernarg layout for this problem (48 bytes, ptrs only, base s[0:1]):
"""
def f2u(f): return struct.unpack('<I', struct.pack('<f', f))[0]

def gen(path, W=5, flags='nt', pairmap='adj', stamp=0, touch=0, NT=32):
    NW = 4; NWG = 256
    o = []; A = o.append
    vm = []; st = {'done': 0}
    def VM(text, tag): A(text); vm.append(tag)
    def WAITN(n):
        A(f"s_waitcnt vmcnt({n})"); st['done'] = max(st['done'], len(vm) - n)
    def REQ(tag):
        idx = len(vm) - 1 - vm[::-1].index(tag)
        if idx >= st['done']: WAITN(len(vm) - idx - 1)
    LDS_ST = 65536; LDS_FLAG = 65536 + 2048
    lds = 65536 + 2048 + 64
    vKld = [1, 2, 3, 4]; vKrd = [5, 6, 7, 8]; vVoff = 9; vQoff = 10
    vMp, vT0, vT1 = 12, 13, 14
    vM = [15, 11]; vA = [16, 18]; vL = [20, 21]; vTmp = 22
    vAl = 24
    vQ = 56; vVT = 56
    vKF = 88; vS = 120; vO = 88
    vP = 152
    vV = 160
    nv = 224
    S = lambda b, h, T, r=0: vS + b * 16 + (h * 2 + T) * 4 + r
    P = lambda h, u=0: vP + h * 4 + u
    aP = lambda t, h, u=0: t * 8 + h * 4 + u
    VT = lambda j, u=0: vVT + j * 4 + u
    O = lambda h, j, r=0: vO + (h * 8 + j) * 4 + r
    Vb = lambda n, i, w=0: vV + (n % 4) * 16 + i * 4 + w
    KF = lambda T, s: vKF + (T * 4 + s) * 4
    Q = lambda h, s: vQ + (h * 4 + s) * 4
    vr = lambda r, n=4: f"v[{r}:{r+n-1}]"
    ar = lambda r, n=4: f"a[{r}:{r+n-1}]"
    sK, sV, sQ, sOut, sWs, sDbg = 's[16:19]', 's[20:23]', 's[24:27]', 's[28:31]', 's[32:35]', 's[36:39]'
    def STAMP(i):
        if stamp: A(f"s_memrealtime s[{64+2*i}:{65+2*i}]")
    A(f"s_cmp_ge_u32 s2, {NWG}\ns_cbranch_scc1 L_end")
    A("s_load_dwordx8 s[4:11], s[0:1], 0\ns_load_dwordx4 s[12:15], s[0:1], 32")
    STAMP(0)
    if stamp:
        A("s_memtime s[80:81]")
        for i in range(1, 8): A(f"s_mov_b64 s[{64+2*i}:{65+2*i}], 0")
    A("v_lshrrev_b32 v1, 6, v0\nv_and_b32 v0, 63, v0")
    A("v_and_b32 v11, 15, v0           ; p / m / n")
    A("v_readfirstlane_b32 s40, v1")
    A("v_lshrrev_b32 v12, 4, v0        ; q / g")
    A("v_lshlrev_b32 v13, 2, v12       ; 4q")
    A("v_xor_b32 v13, v13, v11         ; p ^ 4q")
    A("v_lshlrev_b32 v14, 8, v12       ; q*256")
    for i in range(4):
        A(f"v_xor_b32 v15, {i}, v13\nv_lshl_add_u32 v{vKld[i]}, v15, 4, v14")
    if pairmap == 'adj':
        A("s_lshr_b32 s41, s2, 1\ns_and_b32 s42, s2, 1")
    else:
        A("s_and_b32 s41, s2, 127\ns_lshr_b32 s42, s2, 7")
    A("s_lshl_b32 s43, s42, 2\ns_add_u32 s43, s43, s40      ; widx")
    A("s_lshl_b32 s44, s43, 12      ; K soffset\ns_mov_b32 s45, s44")
    A("s_lshl_b32 s46, s41, 21")
    A("s_lshl_b32 s47, s40, 14")
    A("s_mov_b32 s18, 0x200000\ns_mov_b32 s19, 0x20000")
    A("s_mov_b32 m0, s47")
    A("s_waitcnt lgkmcnt(0)")
    A("s_add_u32 s16, s6, s46\ns_addc_u32 s17, s7, 0")
    B = 3 + W
    NS = NT * 8
    work = {}
    def at(slot, fn): work.setdefault(slot, []).append(fn)
    def setup2():
        A("s_add_u32 s20, s8, s46\ns_addc_u32 s21, s9, 0\ns_mov_b32 s22, 0x200000\ns_mov_b32 s23, 0x20000")
        A("s_mov_b32 s24, s4\ns_mov_b32 s25, s5\ns_mov_b32 s26, 0x100000\ns_mov_b32 s27, 0x20000")
        A("s_lshl_b32 s51, s41, 13\ns_add_u32 s52, s51, 4096")
        A(f"v_lshlrev_b32 v15, 4, v12\nv_lshl_add_u32 v{vQoff}, v11, 8, v15     ; n*256 + g*16")
        for h in range(2):
            for s in range(4):
                VM(f"buffer_load_dwordx4 {vr(Q(h,s))}, v{vQoff}, {sQ}, {'s51' if h==0 else 's52'} offen offset:{s*64}", 'q')
        A(f"v_lshlrev_b32 v{vVoff}, 4, v0")
        A("s_mov_b32 s28, s10\ns_mov_b32 s29, s11\ns_mov_b32 s30, 0x100000\ns_mov_b32 s31, 0x20000")
        A("s_mov_b32 s32, s14\ns_mov_b32 s33, s15\ns_mov_b32 s34, 0x800000\ns_mov_b32 s35, 0x20000")
        A("s_mov_b32 s36, s12\ns_mov_b32 s37, s13\ns_mov_b32 s38, 256\ns_mov_b32 s39, 0x20000")
        A("s_mul_i32 s62, s2, 20992\ns_mul_i32 s55, s40, 5120\ns_add_u32 s63, s62, s55")
        if touch:
            A(f"v_mov_b32 v{vTmp}, 0")
            VM(f"buffer_load_dword v{vTmp+1}, v{vTmp}, {sV}, s45 offen {flags}", 'x')
            A("s_add_u32 s56, s62, 20480")
            VM(f"buffer_load_dword v{vTmp+1}, v{vTmp}, {sWs}, s56 offen", 'x')
            VM(f"buffer_load_dword v{vTmp+1}, v{vTmp}, {sOut}, s51 offen nt", 'x')
            VM(f"buffer_load_dword v{vTmp+1}, v{vTmp}, {sDbg}, 0 offen sc1", 'x')
        A("v_and_b32 v13, 3, v11\nv_lshlrev_b32 v13, 2, v13\nv_lshrrev_b32 v14, 2, v11\nv_add_u32 v13, v13, v14")
        A("v_lshlrev_b32 v13, 8, v13\nv_add_u32 v13, s47, v13")
        A("v_xor_b32 v14, v12, v11      ; g ^ m")
        for s in range(4):
            A(f"v_xor_b32 v15, {4*s}, v14\nv_lshl_add_u32 v{vKrd[s]}, v15, 4, v13")
        c = math.log2(math.e) / math.sqrt(128.0)
        A(f"s_mov_b32 s48, 0x{f2u(c):08x}     ; log2(e)/sqrt(128)")
        A("s_mov_b32 s49, 0x05040100\ns_mov_b32 s50, 0x07060302")
        A(f"v_mov_b32 v{vMp}, 0xff800000")
        A(f"v_mov_b32 v{vL[0]}, 0\nv_mov_b32 v{vL[1]}, 0")
    at(W - 1, setup2)
    def kread(t, T):
        def f():
            n = 2 * t + T
            REQ(('ld', 4 * n + 3))
            for s in range(4):
                A(f"ds_read_b128 {vr(KF(T,s))}, v{vKrd[s]} offset:{(n%4)*4096}")
        return f
    def kmma(t, T, extra=None):
        def f():
            REQ('q')
            A("s_waitcnt lgkmcnt(0)")
            b = t & 1; k = 0
            for s in range(4):
                for h in range(2):
                    cin = '0' if s == 0 else vr(S(b, h, T))
                    A(f"v_mfma_f32_16x16x32_bf16 {vr(S(b,h,T))}, {vr(KF(T,s))}, {vr(Q(h,s))}, {cin}")
                    if extra and k < len(extra) and (s * 2 + h) % 2 == 1: A(extra[k]); k += 1
        return f
    def smax(t):
        def f():
            b = t & 1; tt = [vT0, vT1]
            for h in range(2): A(f"v_max3_f32 v{tt[h]}, v{S(b,h,0,0)}, v{S(b,h,0,1)}, v{S(b,h,0,2)}")
            for h in range(2): A(f"v_max3_f32 v{tt[h]}, v{tt[h]}, v{S(b,h,0,3)}, v{S(b,h,1,0)}")
            for h in range(2): A(f"v_max3_f32 v{tt[h]}, v{tt[h]}, v{S(b,h,1,1)}, v{S(b,h,1,2)}")
            for h in range(2): A(f"v_max_f32 v{tt[h]}, v{tt[h]}, v{S(b,h,1,3)}")
            A(f"v_permlane32_swap_b32 v{vT0}, v{vT1}")
            A(f"v_max_f32 v{vT0}, v{vT0}, v{vT1}")
            A(f"v_mov_b32 v{vT1}, v{vT0}")
            A(f"v_permlane16_swap_b32 v{vT0}, v{vT1}")
            A(f"v_max_f32 v{vT0}, v{vT0}, v{vT1}")
            A(f"v_mul_f32 v{vT0}, s48, v{vT0}")
            A(f"v_max_f32 v{vM[0]}, v{vMp}, v{vT0}")
            A(f"v_sub_f32 v{vT1}, v{vMp}, v{vM[0]}")
            A(f"v_exp_f32 v{vAl+t}, v{vT1}")
            A(f"v_mov_b32 v{vMp}, v{vM[0]}")
            A(f"v_mov_b32 v{vM[1]}, v{vM[0]}")
            A(f"v_mov_b32 v{vA[0]}, v{vAl+t}")
            A(f"v_mov_b32 v{vA[1]}, v{vAl+t}")
            A(f"v_permlane32_swap_b32 v{vM[0]}, v{vM[1]}")
            A(f"v_permlane32_swap_b32 v{vA[0]}, v{vA[1]}")
        return f
    def sregs(b): return [S(b, h, T, r) for h in range(2) for T in range(2) for r in range(4)]
    def sfma(t):
        def f():
            b = t & 1
            for i, r in enumerate(sregs(b)): A(f"v_fma_f32 v{r}, v{r}, s48, -v{vM[i>>3]}")
            for r in sregs(b)[:4]: A(f"v_exp_f32 v{r}, v{r}")
        return f
    def sexp(t, lo, hi):
        def f():
            for r in sregs(t & 1)[lo:hi]: A(f"v_exp_f32 v{r}, v{r}")
        return f
    def spack(t):
        def f():
            b = t & 1
            for h in range(2):
                for u in range(4):
                    T, x = u >> 1, u & 1
                    A(f"v_cvt_pk_bf16_f32 v{P(h,u)}, v{S(b,h,T,2*x)}, v{S(b,h,T,2*x+1)}")
            for h in range(2):
                for u in range(4): A(f"v_accvgpr_write_b32 a{aP(t,h,u)}, v{P(h,u)}")
        return f
    def lsum(t):
        def f():
            b = t & 1
            for h in range(2): A(f"v_fma_f32 v{vL[h]}, v{vL[h]}, v{vA[h]}, v{S(b,h,0,0)}")
            for idx in range(1, 8):
                for h in range(2): A(f"v_add_f32 v{vL[h]}, v{vL[h]}, v{S(b,h,idx>>2,idx&3)}")
        return f
    for t in range(NT):
        s0 = 8 * t + B
        at(s0, kread(t, 0))
        ex = [f"v_exp_f32 v{r}, v{r}" for r in sregs((t - 1) & 1)[12:16]] if t > 0 else None
        at(s0 + 1, kmma(t, 0, ex))
        at(s0 + 4, kread(t, 1))
        at(s0 + 5, kmma(t, 1))
        at(s0 + 6, smax(t))
        at(s0 + 7, sfma(t))
        at(s0 + 8, sexp(t, 4, 12))
        if t == NT - 1: at(s0 + 9, sexp(t, 12, 16))
        at(s0 + 10, spack(t))
        at(s0 + 11, lsum(t))
    def perm(t, j, u):
        T, x, w = u >> 1, u & 1, j >> 1
        n = 2 * t + T
        REQ(('ld', NS + 4 * n + 2 * x + 1))
        A(f"v_perm_b32 v{VT(j,u)}, v{Vb(n,2*x+1,w)}, v{Vb(n,2*x,w)}, {'s49' if j%2==0 else 's50'}")
    def v1(t, i):
        def f():
            if t > 0:
                if i == 0:
                    A(f"v_mov_b32 v{vA[0]}, v{vAl+t}\nv_mov_b32 v{vA[1]}, v{vAl+t}")
                    A(f"v_permlane32_swap_b32 v{vA[0]}, v{vA[1]}")
                for j in (2 * i, 2 * i + 1):
                    for h in range(2):
                        for r in (0, 2):
                            A(f"v_pk_mul_f32 {vr(O(h,j,r),2)}, {vr(O(h,j,r),2)}, {vr(vA[h],2)} op_sel_hi:[1,0]")
            for j in (2 * i, 2 * i + 1):
                for u in (0, 1): perm(t, j, u)
        return f
    def pv(t, j):
        for h in range(2):
            cin = '0' if t == 0 else vr(O(h, j))
            A(f"v_mfma_f32_16x16x32_bf16 {vr(O(h,j))}, {vr(VT(j))}, {ar(aP(t,h))}, {cin}")
    def v2(t, i):
        def f():
            for j in (2 * i, 2 * i + 1):
                for u in (2, 3): perm(t, j, u)
            for j in (2 * i, 2 * i + 1): pv(t, j)
        return f
    def v2last(t):
        def f():
            for j in range(8): perm(t, j, 2)
            perm(t, 0, 3); perm(t, 1, 3)
            for j in range(8):
                pv(t, j)
                if j + 2 < 8: perm(t, j + 2, 3)
        return f
    def stats():
        A(f"v_permlane32_swap_b32 v{vL[0]}, v{vL[1]}")
        A(f"v_add_f32 v{vT0}, v{vL[0]}, v{vL[1]}")
        A(f"v_mov_b32 v{vT1}, v{vT0}")
        A(f"v_permlane16_swap_b32 v{vT0}, v{vT1}")
        A(f"v_add_f32 v{vT0}, v{vT0}, v{vT1}")
        A(f"s_lshl_b32 s46, s40, 9\ns_add_u32 s46, s46, {LDS_ST}")
        A(f"v_lshl_add_u32 v{vT1}, v0, 3, s46")
        A(f"ds_write_b64 v{vT1}, v[{vMp}:{vMp+1}]")
        A(f"v_add_u32 v1, s47, v{vVoff}")
        A("s_lshr_b32 s53, s40, 1       ; h\ns_and_b32 s54, s40, 1     ; jh")
        A(f"s_lshl_b32 s46, s53, 8\ns_add_u32 s46, s46, {LDS_ST}")
        A(f"v_and_b32 v2, 15, v0\nv_lshl_add_u32 v2, v2, 3, s46")
        A(f"s_lshl_b32 s46, s40, 12\nv_add_u32 v3, s46, v{vVoff}")
        A(f"v_lshlrev_b32 v4, 3, v0")
        A(f"v_mov_b32 v5, {LDS_FLAG}")
        A("v_and_b32 v6, 15, v0\nv_lshlrev_b32 v6, 8, v6\nv_lshrrev_b32 v7, 4, v0\nv_lshl_add_u32 v6, v7, 6, v6")
        A("s_add_u32 s56, s63, 4096")
        A(f"s_xor_b32 s57, s2, {1 if pairmap=='adj' else 128}\ns_mul_i32 s57, s57, 20992\ns_add_u32 s57, s57, s55\ns_add_u32 s58, s57, 4096")
        A("s_and_b32 s59, s41, 1\ns_lshl_b32 s59, s59, 4\ns_lshl_b32 s60, 1, s59\ns_lshr_b32 s61, s41, 1\ns_lshl_b32 s61, s61, 2")
        A("v_mov_b32 v7, s60\nv_mov_b32 v8, s61")
        A("s_lshl_b32 s46, s53, 12\ns_add_u32 s46, s46, s51\ns_lshl_b32 s62, s54, 3\ns_add_u32 s62, s46, s62")
    at(NS + B + 4 + 8, stats)
    for t in range(NT):
        s0 = NS + 8 * t + B
        for i in range(4): at(s0 + i, v1(t, i))
        if t < NT - 1:
            for i in range(4): at(s0 + 4 + i, v2(t, i))
        else: at(s0 + 4, v2last(t))
    last = max(work)
    for k in range(last + 1):
        if k < 2 * NS:
            n, i = (k % NS) // 4, k % 4
            if k < NS:
                if i == 0 and n > 0:
                    A(f"s_add_u32 s44, s44, 0x8000\ns_add_u32 m0, s47, {(n%4)*4096}")
            elif i == 0 and n > 0: A("s_add_u32 s45, s45, 0x8000")
            if k >= W: REQ(('ld', k - W))
            if k < NS: VM(f"buffer_load_dwordx4 v{vKld[i]}, {sK}, s44 offen offset:{i*1024} {flags} lds", ('ld', k))
            else: VM(f"buffer_load_dwordx4 {vr(Vb(n,i))}, v{vVoff}, {sV}, s45 offen offset:{i*1024} {flags}", ('ld', k))
        if stamp and k == NS: STAMP(1)
        for f in work.get(k, []): f()
    STAMP(2)
    if stamp: A("s_memtime s[82:83]")
    for qd in range(16):
        h, j = qd >> 3, qd & 7
        qq = (qd & 1) * 8 + (qd >> 1)
        A(f"ds_write_b128 v1, {vr(vO+4*qq)} offset:{qq*1024}")
    A("s_waitcnt lgkmcnt(0)\ns_barrier")
    vSt = 24; vX = 160
    for w in range(4): A(f"ds_read_b64 v[{vSt+2*w}:{vSt+2*w+1}], v2 offset:{w*512}")
    for w in range(4):
        for i in range(4): A(f"ds_read_b128 {vr(vX+(w*4+i)*4)}, v3 offset:{w*16384+i*1024}")
    A("s_waitcnt lgkmcnt(15)")
    vMx = 32; vLs = 33; vF = 34
    A(f"v_max3_f32 v{vMx}, v{vSt}, v{vSt+2}, v{vSt+4}")
    A(f"v_max_f32 v{vMx}, v{vMx}, v{vSt+6}")
    for w in range(4): A(f"v_sub_f32 v{vF+w}, v{vSt+2*w}, v{vMx}")
    for w in range(4): A(f"v_exp_f32 v{vF+w}, v{vF+w}")
    A(f"v_mul_f32 v{vLs}, v{vF}, v{vSt+1}")
    for w in range(1, 4): A(f"v_fmac_f32 v{vLs}, v{vF+w}, v{vSt+2*w+1}")
    vAcc = 40
    A("s_waitcnt lgkmcnt(12)")
    for i in range(16): A(f"v_mul_f32 v{vAcc+i}, v{vF}, v{vX+i}")
    for w in range(1, 4):
        A(f"s_waitcnt lgkmcnt({12-4*w})")
        for i in range(16): A(f"v_fmac_f32 v{vAcc+i}, v{vF+w}, v{vX+w*16+i}")
    STAMP(3)
    for i in range(4):
        A(f"buffer_store_dwordx4 {vr(vAcc+4*i)}, v{vVoff}, {sWs}, s63 offen offset:{i*1024} sc1")
    A(f"buffer_store_dwordx2 v[{vMx}:{vMx+1}], v4, {sWs}, s56 offen sc1")
    A("s_waitcnt vmcnt(0)\ns_barrier")
    STAMP(4)
    A("s_cmp_lg_u32 s40, 0\ns_cbranch_scc1 L_noatomic")
    A("s_mov_b64 exec, 1")
    A(f"buffer_atomic_add v7, v8, {sDbg}, 0 offen sc0")
    A("s_waitcnt vmcnt(0)")
    A(f"v_lshrrev_b32 v7, s59, v7\nv_and_b32 v7, 0xffff, v7")
    A(f"ds_write_b32 v5, v7")
    A("s_waitcnt lgkmcnt(0)")
    A("s_mov_b64 exec, -1")
    A("L_noatomic:\ns_barrier")
    A(f"ds_read_b32 v7, v5")
    A("s_waitcnt lgkmcnt(0)")
    A("v_readfirstlane_b32 s59, v7")
    STAMP(5)
    A("s_cmp_eq_u32 s59, 0\ns_cbranch_scc1 L_fin")
    vY = 56
    A(f"buffer_load_dwordx2 v[10:11], v4, {sWs}, s58 offen sc1")
    for i in range(4):
        A(f"buffer_load_dwordx4 {vr(vY+4*i)}, v{vVoff}, {sWs}, s57 offen offset:{i*1024} sc1")
    A("s_waitcnt vmcnt(4)")
    A(f"v_max_f32 v12, v{vMx}, v10")
    A(f"v_sub_f32 v13, v{vMx}, v12\nv_sub_f32 v14, v10, v12")
    A("v_exp_f32 v13, v13\nv_exp_f32 v14, v14")
    A(f"v_mul_f32 v15, v13, v{vLs}\nv_mul_f32 v16, v14, v11\nv_add_f32 v15, v15, v16")
    A("v_rcp_f32 v15, v15")
    A("v_mul_f32 v13, v13, v15\nv_mul_f32 v14, v14, v15")
    for i in range(16): A(f"v_mul_f32 v{vAcc+i}, v13, v{vAcc+i}")
    A("s_waitcnt vmcnt(0)")
    for i in range(16): A(f"v_mul_f32 v{vY+i}, v14, v{vY+i}")
    for i in range(16): A(f"v_add_f32 v{vAcc+i}, v{vAcc+i}, v{vY+i}")
    for r in range(4):
        A(f"v_cvt_pk_bf16_f32 v{72+2*r}, v{vAcc+0*4+r}, v{vAcc+1*4+r}")
        A(f"v_cvt_pk_bf16_f32 v{73+2*r}, v{vAcc+2*4+r}, v{vAcc+3*4+r}")
    for r in range(4):
        A(f"buffer_store_dwordx2 v[{72+2*r}:{73+2*r}], v6, {sOut}, s62 offen offset:{r*16}")
    if stamp: A("s_waitcnt vmcnt(0)")
    STAMP(6)
    A("L_fin:")
    if stamp:
        A("s_waitcnt lgkmcnt(0)")
        A("s_lshl_b32 s46, s2, 2\ns_add_u32 s46, s46, s40\ns_lshl_b32 s46, s46, 6\ns_add_u32 s46, s46, 0x600000")
        for i in range(7): A(f"v_mov_b32 v{100+i}, s{64+2*i}")
        A("s_getreg_b32 s47, hwreg(HW_REG_XCC_ID)\nv_mov_b32 v107, s47")
        A("s_sub_u32 s82, s82, s80\nv_mov_b32 v108, s82\nv_mov_b32 v109, 0x7fffffff")
        A("v_mov_b32 v110, 0\ns_mov_b64 exec, 1")
        A("buffer_store_dwordx4 v[100:103], v110, s[32:35], s46 offen")
        A("buffer_store_dwordx4 v[104:107], v110, s[32:35], s46 offen offset:16")
        A("buffer_store_dwordx2 v[108:109], v110, s[32:35], s46 offen offset:32")
    A("L_end:\ns_endpgm")
    body, added = fix(o)
    head = HEADER + f"; @launch grid=({NWG},1,1) block=({NW*64},1,1) lds={lds}\n" + \
        f'.amdgcn_target "amdgcn-amd-amdhsa--gfx950"\n.text\n.globl {KN}\n.p2align 8\n.type {KN},@function\n{KN}:\n'
    tail = f"""
.section .rodata,"a"
.p2align 6
.amdhsa_kernel {KN}
  .amdhsa_next_free_vgpr {nv + 256}
  .amdhsa_next_free_sgpr 96
  .amdhsa_accum_offset {nv}
  .amdhsa_group_segment_fixed_size 0
  .amdhsa_kernarg_size 48
  .amdhsa_user_sgpr_count 2
  .amdhsa_user_sgpr_kernarg_segment_ptr 1
  .amdhsa_system_sgpr_workgroup_id_x 1
.end_amdhsa_kernel
"""
    open(path, 'w').write(head + "\n".join(body) + tail)
    print(f"{path}: {len(body)} lines, {added} nop states added", file=sys.stderr)
if __name__ == "__main__":
    kw = {}
    for a in sys.argv[2:]:
        k, v = a.split('=')
        kw[k] = int(v) if v.lstrip('-').isdigit() else v.replace('+', ' ')
    gen(sys.argv[1], **kw)
```

```python
import sys, struct, math
from hz import fix
KN = "standalone__gqa_softmax__sampling_kernel"
HEADER = """; Kernarg layout for this problem (48 bytes, ptrs only, base s[0:1]):
"""
def f2u(f): return struct.unpack('<I', struct.pack('<f', f))[0]

def gen(path, W=5, flags='nt', pairmap='adj', stamp=0, touch=0, NT=32, pre=0, padto=0, oflags=''):
    NW = 4; NWG = 256
    o = []; A = o.append
    vm = []; st = {'done': 0}
    def VM(text, tag): A(text); vm.append(tag)
    def WAITN(n):
        A(f"s_waitcnt vmcnt({n})"); st['done'] = max(st['done'], len(vm) - n)
    def REQ(tag):
        idx = len(vm) - 1 - vm[::-1].index(tag)
        if idx >= st['done']: WAITN(len(vm) - idx - 1)
    LDS_ST = 65536; LDS_FLAG = 65536 + 2048
    lds = 65536 + 2048 + 64
    vKld = [1, 2, 3, 4]; vKrd = [5, 6, 7, 8]; vVoff = 9; vQoff = 10
    vMp, vT0, vT1 = 12, 13, 14
    vM = [15, 11]; vA = [16, 18]; vL = [20, 21]; vTmp = 22
    vAl = 24
    vQ = 56; vVT = 56
    vKF = 88; vS = 120; vO = 88
    vP = 152
    vV = 160
    nv = 224
    S = lambda b, h, T, r=0: vS + b * 16 + (h * 2 + T) * 4 + r
    P = lambda h, u=0: vP + h * 4 + u
    aP = lambda t, h, u=0: t * 8 + h * 4 + u
    VT = lambda j, u=0: vVT + j * 4 + u
    O = lambda h, j, r=0: vO + (h * 8 + j) * 4 + r
    Vb = lambda n, i, w=0: vV + (n % 4) * 16 + i * 4 + w
    KF = lambda T, s: vKF + (T * 4 + s) * 4
    Q = lambda h, s: vQ + (h * 4 + s) * 4
    vr = lambda r, n=4: f"v[{r}:{r+n-1}]"
    ar = lambda r, n=4: f"a[{r}:{r+n-1}]"
    sK, sV, sQ, sOut, sWs, sDbg = 's[16:19]', 's[20:23]', 's[24:27]', 's[28:31]', 's[32:35]', 's[36:39]'
    def STAMP(i):
        if stamp: A(f"s_memrealtime s[{64+2*i}:{65+2*i}]")
    A(f"s_cmp_ge_u32 s2, {NWG}\ns_cbranch_scc1 L_end")
    A("s_load_dwordx8 s[4:11], s[0:1], 0\ns_load_dwordx4 s[12:15], s[0:1], 32")
    STAMP(0)
    if padto: A("s_memrealtime s[84:85]")
    if stamp:
        A("s_memtime s[80:81]")
        for i in range(1, 8): A(f"s_mov_b64 s[{64+2*i}:{65+2*i}], 0")
    A("v_lshrrev_b32 v1, 6, v0\nv_and_b32 v0, 63, v0")
    A("v_and_b32 v11, 15, v0           ; p / m / n")
    A("v_readfirstlane_b32 s40, v1")
    A("v_lshrrev_b32 v12, 4, v0        ; q / g")
    A("v_lshlrev_b32 v13, 2, v12       ; 4q")
    A("v_xor_b32 v13, v13, v11         ; p ^ 4q")
    A("v_lshlrev_b32 v14, 8, v12       ; q*256")
    for i in range(4):
        A(f"v_xor_b32 v15, {i}, v13\nv_lshl_add_u32 v{vKld[i]}, v15, 4, v14")
    if pairmap == 'adj':
        A("s_lshr_b32 s41, s2, 1\ns_and_b32 s42, s2, 1")
    else:
        A("s_and_b32 s41, s2, 127\ns_lshr_b32 s42, s2, 7")
    A("s_lshl_b32 s43, s42, 2\ns_add_u32 s43, s43, s40      ; widx")
    A("s_lshl_b32 s44, s43, 12      ; K soffset\ns_mov_b32 s45, s44")
    A("s_lshl_b32 s46, s41, 21")
    A("s_lshl_b32 s47, s40, 14")
    A("s_mov_b32 s18, 0x200000\ns_mov_b32 s19, 0x20000")
    A("s_mov_b32 m0, s47")
    A("s_waitcnt lgkmcnt(0)")
    A("s_add_u32 s16, s6, s46\ns_addc_u32 s17, s7, 0")
    if pre:
        A("s_add_u32 s20, s8, s46\ns_addc_u32 s21, s9, 0\ns_mov_b32 s22, 0x200000\ns_mov_b32 s23, 0x20000")
        A(f"v_lshlrev_b32 v{vVoff}, 4, v0")
        for nm, srd in (('v', sV), ('k', sK)):
            A(f"s_mov_b32 s60, s44\ns_mov_b32 s61, 64\nL_pre{nm}:")
            for i in range(4):
                A(f"s_waitcnt vmcnt({W-1})\nbuffer_load_dwordx4 v[{160+4*i}:{163+4*i}], v{vVoff}, {srd}, s60 offen offset:{i*1024} {flags}")
            A(f"s_add_u32 s60, s60, 0x8000\ns_sub_u32 s61, s61, 1\ns_cmp_eq_u32 s61, 0\ns_cbranch_scc0 L_pre{nm}")
        A("s_waitcnt vmcnt(0)")
    B = 3 + W
    NS = NT * 8
    work = {}
    def at(slot, fn): work.setdefault(slot, []).append(fn)
    def setup2():
        A("s_add_u32 s20, s8, s46\ns_addc_u32 s21, s9, 0\ns_mov_b32 s22, 0x200000\ns_mov_b32 s23, 0x20000")
        A("s_mov_b32 s24, s4\ns_mov_b32 s25, s5\ns_mov_b32 s26, 0x100000\ns_mov_b32 s27, 0x20000")
        A("s_lshl_b32 s51, s41, 13\ns_add_u32 s52, s51, 4096")
        A(f"v_lshlrev_b32 v15, 4, v12\nv_lshl_add_u32 v{vQoff}, v11, 8, v15     ; n*256 + g*16")
        for h in range(2):
            for s in range(4):
                VM(f"buffer_load_dwordx4 {vr(Q(h,s))}, v{vQoff}, {sQ}, {'s51' if h==0 else 's52'} offen offset:{s*64}", 'q')
        A(f"v_lshlrev_b32 v{vVoff}, 4, v0")
        A("s_mov_b32 s28, s10\ns_mov_b32 s29, s11\ns_mov_b32 s30, 0x100000\ns_mov_b32 s31, 0x20000")
        A("s_mov_b32 s32, s14\ns_mov_b32 s33, s15\ns_mov_b32 s34, 0x800000\ns_mov_b32 s35, 0x20000")
        A("s_mov_b32 s36, s12\ns_mov_b32 s37, s13\ns_mov_b32 s38, 256\ns_mov_b32 s39, 0x20000")
        A("s_mul_i32 s62, s2, 20992\ns_mul_i32 s55, s40, 5120\ns_add_u32 s63, s62, s55")
        if touch:
            A(f"v_mov_b32 v{vTmp}, 0")
            VM(f"buffer_load_dword v{vTmp+1}, v{vTmp}, {sV}, s45 offen {flags}", 'x')
            A("s_add_u32 s56, s62, 20480")
            VM(f"buffer_load_dword v{vTmp+1}, v{vTmp}, {sWs}, s56 offen", 'x')
            VM(f"buffer_load_dword v{vTmp+1}, v{vTmp}, {sOut}, s51 offen nt", 'x')
            VM(f"buffer_load_dword v{vTmp+1}, v{vTmp}, {sDbg}, 0 offen sc1", 'x')
        A("v_and_b32 v13, 3, v11\nv_lshlrev_b32 v13, 2, v13\nv_lshrrev_b32 v14, 2, v11\nv_add_u32 v13, v13, v14")
        A("v_lshlrev_b32 v13, 8, v13\nv_add_u32 v13, s47, v13")
        A("v_xor_b32 v14, v12, v11      ; g ^ m")
        for s in range(4):
            A(f"v_xor_b32 v15, {4*s}, v14\nv_lshl_add_u32 v{vKrd[s]}, v15, 4, v13")
        c = math.log2(math.e) / math.sqrt(128.0)
        A(f"s_mov_b32 s48, 0x{f2u(c):08x}     ; log2(e)/sqrt(128)")
        A("s_mov_b32 s49, 0x05040100\ns_mov_b32 s50, 0x07060302")
        A(f"v_mov_b32 v{vMp}, 0xff800000")
        A(f"v_mov_b32 v{vL[0]}, 0\nv_mov_b32 v{vL[1]}, 0")
    at(W - 1, setup2)
    def kread(t, T):
        def f():
            n = 2 * t + T
            REQ(('ld', 4 * n + 3))
            for s in range(4):
                A(f"ds_read_b128 {vr(KF(T,s))}, v{vKrd[s]} offset:{(n%4)*4096}")
        return f
    def kmma(t, T, extra=None):
        def f():
            REQ('q')
            A("s_waitcnt lgkmcnt(0)")
            b = t & 1; k = 0
            for s in range(4):
                for h in range(2):
                    cin = '0' if s == 0 else vr(S(b, h, T))
                    A(f"v_mfma_f32_16x16x32_bf16 {vr(S(b,h,T))}, {vr(KF(T,s))}, {vr(Q(h,s))}, {cin}")
                    if extra and k < len(extra) and (s * 2 + h) % 2 == 1: A(extra[k]); k += 1
        return f
    def smax(t):
        def f():
            b = t & 1; tt = [vT0, vT1]
            for h in range(2): A(f"v_max3_f32 v{tt[h]}, v{S(b,h,0,0)}, v{S(b,h,0,1)}, v{S(b,h,0,2)}")
            for h in range(2): A(f"v_max3_f32 v{tt[h]}, v{tt[h]}, v{S(b,h,0,3)}, v{S(b,h,1,0)}")
            for h in range(2): A(f"v_max3_f32 v{tt[h]}, v{tt[h]}, v{S(b,h,1,1)}, v{S(b,h,1,2)}")
            for h in range(2): A(f"v_max_f32 v{tt[h]}, v{tt[h]}, v{S(b,h,1,3)}")
            A(f"v_permlane32_swap_b32 v{vT0}, v{vT1}")
            A(f"v_max_f32 v{vT0}, v{vT0}, v{vT1}")
            A(f"v_mov_b32 v{vT1}, v{vT0}")
            A(f"v_permlane16_swap_b32 v{vT0}, v{vT1}")
            A(f"v_max_f32 v{vT0}, v{vT0}, v{vT1}")
            A(f"v_mul_f32 v{vT0}, s48, v{vT0}")
            A(f"v_max_f32 v{vM[0]}, v{vMp}, v{vT0}")
            A(f"v_sub_f32 v{vT1}, v{vMp}, v{vM[0]}")
            A(f"v_exp_f32 v{vAl+t}, v{vT1}")
            A(f"v_mov_b32 v{vMp}, v{vM[0]}")
            A(f"v_mov_b32 v{vM[1]}, v{vM[0]}")
            A(f"v_mov_b32 v{vA[0]}, v{vAl+t}")
            A(f"v_mov_b32 v{vA[1]}, v{vAl+t}")
            A(f"v_permlane32_swap_b32 v{vM[0]}, v{vM[1]}")
            A(f"v_permlane32_swap_b32 v{vA[0]}, v{vA[1]}")
        return f
    def sregs(b): return [S(b, h, T, r) for h in range(2) for T in range(2) for r in range(4)]
    def sfma(t):
        def f():
            b = t & 1
            for i, r in enumerate(sregs(b)): A(f"v_fma_f32 v{r}, v{r}, s48, -v{vM[i>>3]}")
            for r in sregs(b)[:4]: A(f"v_exp_f32 v{r}, v{r}")
        return f
    def sexp(t, lo, hi):
        def f():
            for r in sregs(t & 1)[lo:hi]: A(f"v_exp_f32 v{r}, v{r}")
        return f
    def spack(t):
        def f():
            b = t & 1
            for h in range(2):
                for u in range(4):
                    T, x = u >> 1, u & 1
                    A(f"v_cvt_pk_bf16_f32 v{P(h,u)}, v{S(b,h,T,2*x)}, v{S(b,h,T,2*x+1)}")
            for h in range(2):
                for u in range(4): A(f"v_accvgpr_write_b32 a{aP(t,h,u)}, v{P(h,u)}")
        return f
    def lsum(t):
        def f():
            b = t & 1
            for h in range(2): A(f"v_fma_f32 v{vL[h]}, v{vL[h]}, v{vA[h]}, v{S(b,h,0,0)}")
            for idx in range(1, 8):
                for h in range(2): A(f"v_add_f32 v{vL[h]}, v{vL[h]}, v{S(b,h,idx>>2,idx&3)}")
        return f
    for t in range(NT):
        s0 = 8 * t + B
        at(s0, kread(t, 0))
        ex = [f"v_exp_f32 v{r}, v{r}" for r in sregs((t - 1) & 1)[12:16]] if t > 0 else None
        at(s0 + 1, kmma(t, 0, ex))
        at(s0 + 4, kread(t, 1))
        at(s0 + 5, kmma(t, 1))
        at(s0 + 6, smax(t))
        at(s0 + 7, sfma(t))
        at(s0 + 8, sexp(t, 4, 12))
        if t == NT - 1: at(s0 + 9, sexp(t, 12, 16))
        at(s0 + 10, spack(t))
        at(s0 + 11, lsum(t))
    def perm(t, j, u):
        T, x, w = u >> 1, u & 1, j >> 1
        n = 2 * t + T
        REQ(('ld', NS + 4 * n + 2 * x + 1))
        A(f"v_perm_b32 v{VT(j,u)}, v{Vb(n,2*x+1,w)}, v{Vb(n,2*x,w)}, {'s49' if j%2==0 else 's50'}")
    def v1(t, i):
        def f():
            if t > 0:
                if i == 0:
                    A(f"v_mov_b32 v{vA[0]}, v{vAl+t}\nv_mov_b32 v{vA[1]}, v{vAl+t}")
                    A(f"v_permlane32_swap_b32 v{vA[0]}, v{vA[1]}")
                for j in (2 * i, 2 * i + 1):
                    for h in range(2):
                        for r in (0, 2):
                            A(f"v_pk_mul_f32 {vr(O(h,j,r),2)}, {vr(O(h,j,r),2)}, {vr(vA[h],2)} op_sel_hi:[1,0]")
            for j in (2 * i, 2 * i + 1):
                for u in (0, 1): perm(t, j, u)
        return f
    def pv(t, j):
        for h in range(2):
            cin = '0' if t == 0 else vr(O(h, j))
            A(f"v_mfma_f32_16x16x32_bf16 {vr(O(h,j))}, {vr(VT(j))}, {ar(aP(t,h))}, {cin}")
    def v2(t, i):
        def f():
            for j in (2 * i, 2 * i + 1):
                for u in (2, 3): perm(t, j, u)
            for j in (2 * i, 2 * i + 1): pv(t, j)
        return f
    def v2last(t):
        def f():
            for j in range(8): perm(t, j, 2)
            perm(t, 0, 3); perm(t, 1, 3)
            for j in range(8):
                pv(t, j)
                if j + 2 < 8: perm(t, j + 2, 3)
        return f
    def stats():
        A(f"v_permlane32_swap_b32 v{vL[0]}, v{vL[1]}")
        A(f"v_add_f32 v{vT0}, v{vL[0]}, v{vL[1]}")
        A(f"v_mov_b32 v{vT1}, v{vT0}")
        A(f"v_permlane16_swap_b32 v{vT0}, v{vT1}")
        A(f"v_add_f32 v{vT0}, v{vT0}, v{vT1}")
        A(f"s_lshl_b32 s46, s40, 9\ns_add_u32 s46, s46, {LDS_ST}")
        A(f"v_lshl_add_u32 v{vT1}, v0, 3, s46")
        A(f"ds_write_b64 v{vT1}, v[{vMp}:{vMp+1}]")
        A(f"v_add_u32 v1, s47, v{vVoff}")
        A("s_lshr_b32 s53, s40, 1       ; h\ns_and_b32 s54, s40, 1     ; jh")
        A(f"s_lshl_b32 s46, s53, 8\ns_add_u32 s46, s46, {LDS_ST}")
        A(f"v_and_b32 v2, 15, v0\nv_lshl_add_u32 v2, v2, 3, s46")
        A(f"s_lshl_b32 s46, s40, 12\nv_add_u32 v3, s46, v{vVoff}")
        A(f"v_lshlrev_b32 v4, 3, v0")
        A(f"v_mov_b32 v5, {LDS_FLAG}")
        A("v_and_b32 v6, 15, v0\nv_lshlrev_b32 v6, 8, v6\nv_lshrrev_b32 v7, 4, v0\nv_lshl_add_u32 v6, v7, 6, v6")
        A("s_add_u32 s56, s63, 4096")
        A(f"s_xor_b32 s57, s2, {1 if pairmap=='adj' else 128}\ns_mul_i32 s57, s57, 20992\ns_add_u32 s57, s57, s55\ns_add_u32 s58, s57, 4096")
        A("s_and_b32 s59, s41, 1\ns_lshl_b32 s59, s59, 4\ns_lshl_b32 s60, 1, s59\ns_lshr_b32 s61, s41, 1\ns_lshl_b32 s61, s61, 2")
        A("v_mov_b32 v7, s60\nv_mov_b32 v8, s61")
        A("s_lshl_b32 s46, s53, 12\ns_add_u32 s46, s46, s51\ns_lshl_b32 s62, s54, 3\ns_add_u32 s62, s46, s62")
    at(NS + B + 4 + 8, stats)
    for t in range(NT):
        s0 = NS + 8 * t + B
        for i in range(4): at(s0 + i, v1(t, i))
        if t < NT - 1:
            for i in range(4): at(s0 + 4 + i, v2(t, i))
        else: at(s0 + 4, v2last(t))
    last = max(work)
    for k in range(last + 1):
        if k < 2 * NS:
            n, i = (k % NS) // 4, k % 4
            if k < NS:
                if i == 0 and n > 0:
                    A(f"s_add_u32 s44, s44, 0x8000\ns_add_u32 m0, s47, {(n%4)*4096}")
            elif i == 0 and n > 0: A("s_add_u32 s45, s45, 0x8000")
            if k >= W: REQ(('ld', k - W))
            if k < NS: VM(f"buffer_load_dwordx4 v{vKld[i]}, {sK}, s44 offen offset:{i*1024} {flags} lds", ('ld', k))
            else: VM(f"buffer_load_dwordx4 {vr(Vb(n,i))}, v{vVoff}, {sV}, s45 offen offset:{i*1024} {flags}", ('ld', k))
        if stamp and k == NS: STAMP(1)
        for f in work.get(k, []): f()
    STAMP(2)
    if stamp: A("s_memtime s[82:83]")
    for qd in range(16):
        h, j = qd >> 3, qd & 7
        qq = (qd & 1) * 8 + (qd >> 1)
        A(f"ds_write_b128 v1, {vr(vO+4*qq)} offset:{qq*1024}")
    A("s_waitcnt lgkmcnt(0)\ns_barrier")
    vSt = 24; vX = 160
    for w in range(4): A(f"ds_read_b64 v[{vSt+2*w}:{vSt+2*w+1}], v2 offset:{w*512}")
    for w in range(4):
        for i in range(4): A(f"ds_read_b128 {vr(vX+(w*4+i)*4)}, v3 offset:{w*16384+i*1024}")
    A("s_waitcnt lgkmcnt(15)")
    vMx = 32; vLs = 33; vF = 34
    A(f"v_max3_f32 v{vMx}, v{vSt}, v{vSt+2}, v{vSt+4}")
    A(f"v_max_f32 v{vMx}, v{vMx}, v{vSt+6}")
    for w in range(4): A(f"v_sub_f32 v{vF+w}, v{vSt+2*w}, v{vMx}")
    for w in range(4): A(f"v_exp_f32 v{vF+w}, v{vF+w}")
    A(f"v_mul_f32 v{vLs}, v{vF}, v{vSt+1}")
    for w in range(1, 4): A(f"v_fmac_f32 v{vLs}, v{vF+w}, v{vSt+2*w+1}")
    vAcc = 40
    A("s_waitcnt lgkmcnt(12)")
    for i in range(16): A(f"v_mul_f32 v{vAcc+i}, v{vF}, v{vX+i}")
    for w in range(1, 4):
        A(f"s_waitcnt lgkmcnt({12-4*w})")
        for i in range(16): A(f"v_fmac_f32 v{vAcc+i}, v{vF+w}, v{vX+w*16+i}")
    STAMP(3)
    for i in range(4):
        A(f"buffer_store_dwordx4 {vr(vAcc+4*i)}, v{vVoff}, {sWs}, s63 offen offset:{i*1024} sc1")
    A(f"buffer_store_dwordx2 v[{vMx}:{vMx+1}], v4, {sWs}, s56 offen sc1")
    A("s_waitcnt vmcnt(0)\ns_barrier")
    STAMP(4)
    A("s_cmp_lg_u32 s40, 0\ns_cbranch_scc1 L_noatomic")
    A("s_mov_b64 exec, 1")
    A(f"buffer_atomic_add v7, v8, {sDbg}, 0 offen sc0")
    A("s_waitcnt vmcnt(0)")
    A(f"v_lshrrev_b32 v7, s59, v7\nv_and_b32 v7, 0xffff, v7")
    A(f"ds_write_b32 v5, v7")
    A("s_waitcnt lgkmcnt(0)")
    A("s_mov_b64 exec, -1")
    A("L_noatomic:\ns_barrier")
    A(f"ds_read_b32 v7, v5")
    A("s_waitcnt lgkmcnt(0)")
    A("v_readfirstlane_b32 s59, v7")
    STAMP(5)
    A("s_cmp_eq_u32 s59, 0\ns_cbranch_scc1 L_fin")
    vY = 56
    A(f"buffer_load_dwordx2 v[10:11], v4, {sWs}, s58 offen sc1")
    for i in range(4):
        A(f"buffer_load_dwordx4 {vr(vY+4*i)}, v{vVoff}, {sWs}, s57 offen offset:{i*1024} sc1")
    A("s_waitcnt vmcnt(4)")
    A(f"v_max_f32 v12, v{vMx}, v10")
    A(f"v_sub_f32 v13, v{vMx}, v12\nv_sub_f32 v14, v10, v12")
    A("v_exp_f32 v13, v13\nv_exp_f32 v14, v14")
    A(f"v_mul_f32 v15, v13, v{vLs}\nv_mul_f32 v16, v14, v11\nv_add_f32 v15, v15, v16")
    A("v_rcp_f32 v15, v15")
    A("v_mul_f32 v13, v13, v15\nv_mul_f32 v14, v14, v15")
    for i in range(16): A(f"v_mul_f32 v{vAcc+i}, v13, v{vAcc+i}")
    A("s_waitcnt vmcnt(0)")
    for i in range(16): A(f"v_mul_f32 v{vY+i}, v14, v{vY+i}")
    for i in range(16): A(f"v_add_f32 v{vAcc+i}, v{vAcc+i}, v{vY+i}")
    for r in range(4):
        A(f"v_cvt_pk_bf16_f32 v{72+2*r}, v{vAcc+0*4+r}, v{vAcc+1*4+r}")
        A(f"v_cvt_pk_bf16_f32 v{73+2*r}, v{vAcc+2*4+r}, v{vAcc+3*4+r}")
    for r in range(4):
        A(f"buffer_store_dwordx2 v[{72+2*r}:{73+2*r}], v6, {sOut}, s62 offen offset:{r*16} {oflags}")
    if stamp: A("s_waitcnt vmcnt(0)")
    STAMP(6)
    A("L_fin:")
    if padto:
        A(f"s_waitcnt vmcnt(0)\nL_pad:\ns_memrealtime s[86:87]\ns_waitcnt lgkmcnt(0)\ns_sub_u32 s86, s86, s84\ns_cmp_lt_u32 s86, {padto*100}\ns_cbranch_scc1 L_pad")
    if stamp:
        A("s_waitcnt lgkmcnt(0)")
        A("s_lshl_b32 s46, s2, 2\ns_add_u32 s46, s46, s40\ns_lshl_b32 s46, s46, 6\ns_add_u32 s46, s46, 0x600000")
        for i in range(7): A(f"v_mov_b32 v{100+i}, s{64+2*i}")
        A("s_getreg_b32 s47, hwreg(HW_REG_XCC_ID)\nv_mov_b32 v107, s47")
        A("s_sub_u32 s82, s82, s80\nv_mov_b32 v108, s82\nv_mov_b32 v109, 0x7fffffff")
        A("v_mov_b32 v110, 0\ns_mov_b64 exec, 1")
        A("buffer_store_dwordx4 v[100:103], v110, s[32:35], s46 offen")
        A("buffer_store_dwordx4 v[104:107], v110, s[32:35], s46 offen offset:16")
        A("buffer_store_dwordx2 v[108:109], v110, s[32:35], s46 offen offset:32")
    A("L_end:\ns_endpgm")
    body, added = fix(o)
    head = HEADER + f"; @launch grid=({NWG},1,1) block=({NW*64},1,1) lds={lds}\n" + \
        f'.amdgcn_target "amdgcn-amd-amdhsa--gfx950"\n.text\n.globl {KN}\n.p2align 8\n.type {KN},@function\n{KN}:\n'
    tail = f"""
.section .rodata,"a"
.p2align 6
.amdhsa_kernel {KN}
  .amdhsa_next_free_vgpr {nv + 256}
  .amdhsa_next_free_sgpr 96
  .amdhsa_accum_offset {nv}
  .amdhsa_group_segment_fixed_size 0
  .amdhsa_kernarg_size 48
  .amdhsa_user_sgpr_count 2
  .amdhsa_user_sgpr_kernarg_segment_ptr 1
  .amdhsa_system_sgpr_workgroup_id_x 1
.end_amdhsa_kernel
"""
    open(path, 'w').write(head + "\n".join(body) + tail)
    print(f"{path}: {len(body)} lines, {added} nop states added", file=sys.stderr)
if __name__ == "__main__":
    kw = {}
    for a in sys.argv[2:]:
        k, v = a.split('=')
        kw[k] = int(v) if v.lstrip('-').isdigit() else v.replace('+', ' ')
    gen(sys.argv[1], **kw)
```

```python
import sys, struct, math
from hz import fix
KN = "standalone__gqa_softmax__sampling_kernel"
HEADER = """; Kernarg layout for this problem (48 bytes, ptrs only, base s[0:1]):
"""
def f2u(f): return struct.unpack('<I', struct.pack('<f', f))[0]

def gen(path, W=5, flags='nt', pairmap='adj', stamp=0, touch=0, NT=32, pre=0, padto=0, oflags='', gpad=0):
    NW = 4; NWG = 256
    o = []; A = o.append
    vm = []; st = {'done': 0}
    def VM(text, tag): A(text); vm.append(tag)
    def WAITN(n):
        A(f"s_waitcnt vmcnt({n})"); st['done'] = max(st['done'], len(vm) - n)
    def REQ(tag):
        idx = len(vm) - 1 - vm[::-1].index(tag)
        if idx >= st['done']: WAITN(len(vm) - idx - 1)
    LDS_ST = 65536; LDS_FLAG = 65536 + 2048
    lds = 65536 + 2048 + 64
    vKld = [1, 2, 3, 4]; vKrd = [5, 6, 7, 8]; vVoff = 9; vQoff = 10
    vMp, vT0, vT1 = 12, 13, 14
    vM = [15, 11]; vA = [16, 18]; vL = [20, 21]; vTmp = 22
    vAl = 24
    vQ = 56; vVT = 56
    vKF = 88; vS = 120; vO = 88
    vP = 152
    vV = 160
    nv = 224
    S = lambda b, h, T, r=0: vS + b * 16 + (h * 2 + T) * 4 + r
    P = lambda h, u=0: vP + h * 4 + u
    aP = lambda t, h, u=0: t * 8 + h * 4 + u
    VT = lambda j, u=0: vVT + j * 4 + u
    O = lambda h, j, r=0: vO + (h * 8 + j) * 4 + r
    Vb = lambda n, i, w=0: vV + (n % 4) * 16 + i * 4 + w
    KF = lambda T, s: vKF + (T * 4 + s) * 4
    Q = lambda h, s: vQ + (h * 4 + s) * 4
    vr = lambda r, n=4: f"v[{r}:{r+n-1}]"
    ar = lambda r, n=4: f"a[{r}:{r+n-1}]"
    sK, sV, sQ, sOut, sWs, sDbg = 's[16:19]', 's[20:23]', 's[24:27]', 's[28:31]', 's[32:35]', 's[36:39]'
    def STAMP(i):
        if stamp: A(f"s_memrealtime s[{64+2*i}:{65+2*i}]")
    A(f"s_cmp_ge_u32 s2, {NWG}\ns_cbranch_scc1 L_end")
    A("s_load_dwordx8 s[4:11], s[0:1], 0\ns_load_dwordx4 s[12:15], s[0:1], 32")
    STAMP(0)
    if padto: A("s_memrealtime s[84:85]")
    if stamp:
        A("s_memtime s[80:81]")
        for i in range(1, 8): A(f"s_mov_b64 s[{64+2*i}:{65+2*i}], 0")
    A("v_lshrrev_b32 v1, 6, v0\nv_and_b32 v0, 63, v0")
    A("v_and_b32 v11, 15, v0           ; p / m / n")
    A("v_readfirstlane_b32 s40, v1")
    A("v_lshrrev_b32 v12, 4, v0        ; q / g")
    A("v_lshlrev_b32 v13, 2, v12       ; 4q")
    A("v_xor_b32 v13, v13, v11         ; p ^ 4q")
    A("v_lshlrev_b32 v14, 8, v12       ; q*256")
    for i in range(4):
        A(f"v_xor_b32 v15, {i}, v13\nv_lshl_add_u32 v{vKld[i]}, v15, 4, v14")
    if pairmap == 'adj':
        A("s_lshr_b32 s41, s2, 1\ns_and_b32 s42, s2, 1")
    else:
        A("s_and_b32 s41, s2, 127\ns_lshr_b32 s42, s2, 7")
    A("s_lshl_b32 s43, s42, 2\ns_add_u32 s43, s43, s40      ; widx")
    A("s_lshl_b32 s44, s43, 12      ; K soffset\ns_mov_b32 s45, s44")
    A("s_lshl_b32 s46, s41, 21")
    A("s_lshl_b32 s47, s40, 14")
    A("s_mov_b32 s18, 0x200000\ns_mov_b32 s19, 0x20000")
    A("s_mov_b32 m0, s47")
    A("s_waitcnt lgkmcnt(0)")
    A("s_add_u32 s16, s6, s46\ns_addc_u32 s17, s7, 0")
    if pre:
        A("s_add_u32 s20, s8, s46\ns_addc_u32 s21, s9, 0\ns_mov_b32 s22, 0x200000\ns_mov_b32 s23, 0x20000")
        A(f"v_lshlrev_b32 v{vVoff}, 4, v0")
        for nm, srd in (('v', sV), ('k', sK)):
            A(f"s_mov_b32 s60, s44\ns_mov_b32 s61, 64\nL_pre{nm}:")
            for i in range(4):
                A(f"s_waitcnt vmcnt({W-1})\nbuffer_load_dwordx4 v[{160+4*i}:{163+4*i}], v{vVoff}, {srd}, s60 offen offset:{i*1024} {flags}")
            A(f"s_add_u32 s60, s60, 0x8000\ns_sub_u32 s61, s61, 1\ns_cmp_eq_u32 s61, 0\ns_cbranch_scc0 L_pre{nm}")
        A("s_waitcnt vmcnt(0)")
    B = 3 + W
    NS = NT * 8
    work = {}
    def at(slot, fn): work.setdefault(slot, []).append(fn)
    def setup2():
        A("s_add_u32 s20, s8, s46\ns_addc_u32 s21, s9, 0\ns_mov_b32 s22, 0x200000\ns_mov_b32 s23, 0x20000")
        A("s_mov_b32 s24, s4\ns_mov_b32 s25, s5\ns_mov_b32 s26, 0x100000\ns_mov_b32 s27, 0x20000")
        A("s_lshl_b32 s51, s41, 13\ns_add_u32 s52, s51, 4096")
        A(f"v_lshlrev_b32 v15, 4, v12\nv_lshl_add_u32 v{vQoff}, v11, 8, v15     ; n*256 + g*16")
        for h in range(2):
            for s in range(4):
                VM(f"buffer_load_dwordx4 {vr(Q(h,s))}, v{vQoff}, {sQ}, {'s51' if h==0 else 's52'} offen offset:{s*64}", 'q')
        A(f"v_lshlrev_b32 v{vVoff}, 4, v0")
        A("s_mov_b32 s28, s10\ns_mov_b32 s29, s11\ns_mov_b32 s30, 0x100000\ns_mov_b32 s31, 0x20000")
        A("s_mov_b32 s32, s14\ns_mov_b32 s33, s15\ns_mov_b32 s34, 0x800000\ns_mov_b32 s35, 0x20000")
        A("s_mov_b32 s36, s12\ns_mov_b32 s37, s13\ns_mov_b32 s38, 256\ns_mov_b32 s39, 0x20000")
        A("s_mul_i32 s62, s2, 20992\ns_mul_i32 s55, s40, 5120\ns_add_u32 s63, s62, s55")
        if touch:
            A(f"v_mov_b32 v{vTmp}, 0")
            VM(f"buffer_load_dword v{vTmp+1}, v{vTmp}, {sV}, s45 offen {flags}", 'x')
            A("s_add_u32 s56, s62, 20480")
            VM(f"buffer_load_dword v{vTmp+1}, v{vTmp}, {sWs}, s56 offen", 'x')
            VM(f"buffer_load_dword v{vTmp+1}, v{vTmp}, {sOut}, s51 offen nt", 'x')
            VM(f"buffer_load_dword v{vTmp+1}, v{vTmp}, {sDbg}, 0 offen sc1", 'x')
        A("v_and_b32 v13, 3, v11\nv_lshlrev_b32 v13, 2, v13\nv_lshrrev_b32 v14, 2, v11\nv_add_u32 v13, v13, v14")
        A("v_lshlrev_b32 v13, 8, v13\nv_add_u32 v13, s47, v13")
        A("v_xor_b32 v14, v12, v11      ; g ^ m")
        for s in range(4):
            A(f"v_xor_b32 v15, {4*s}, v14\nv_lshl_add_u32 v{vKrd[s]}, v15, 4, v13")
        c = math.log2(math.e) / math.sqrt(128.0)
        A(f"s_mov_b32 s48, 0x{f2u(c):08x}     ; log2(e)/sqrt(128)")
        A("s_mov_b32 s49, 0x05040100\ns_mov_b32 s50, 0x07060302")
        A(f"v_mov_b32 v{vMp}, 0xff800000")
        A(f"v_mov_b32 v{vL[0]}, 0\nv_mov_b32 v{vL[1]}, 0")
    at(W - 1, setup2)
    def kread(t, T):
        def f():
            n = 2 * t + T
            REQ(('ld', 4 * n + 3))
            for s in range(4):
                A(f"ds_read_b128 {vr(KF(T,s))}, v{vKrd[s]} offset:{(n%4)*4096}")
        return f
    def kmma(t, T, extra=None):
        def f():
            REQ('q')
            A("s_waitcnt lgkmcnt(0)")
            b = t & 1; k = 0
            for s in range(4):
                for h in range(2):
                    cin = '0' if s == 0 else vr(S(b, h, T))
                    A(f"v_mfma_f32_16x16x32_bf16 {vr(S(b,h,T))}, {vr(KF(T,s))}, {vr(Q(h,s))}, {cin}")
                    if extra and k < len(extra) and (s * 2 + h) % 2 == 1: A(extra[k]); k += 1
        return f
    def smax(t):
        def f():
            b = t & 1; tt = [vT0, vT1]
            for h in range(2): A(f"v_max3_f32 v{tt[h]}, v{S(b,h,0,0)}, v{S(b,h,0,1)}, v{S(b,h,0,2)}")
            for h in range(2): A(f"v_max3_f32 v{tt[h]}, v{tt[h]}, v{S(b,h,0,3)}, v{S(b,h,1,0)}")
            for h in range(2): A(f"v_max3_f32 v{tt[h]}, v{tt[h]}, v{S(b,h,1,1)}, v{S(b,h,1,2)}")
            for h in range(2): A(f"v_max_f32 v{tt[h]}, v{tt[h]}, v{S(b,h,1,3)}")
            A(f"v_permlane32_swap_b32 v{vT0}, v{vT1}")
            A(f"v_max_f32 v{vT0}, v{vT0}, v{vT1}")
            A(f"v_mov_b32 v{vT1}, v{vT0}")
            A(f"v_permlane16_swap_b32 v{vT0}, v{vT1}")
            A(f"v_max_f32 v{vT0}, v{vT0}, v{vT1}")
            A(f"v_mul_f32 v{vT0}, s48, v{vT0}")
            A(f"v_max_f32 v{vM[0]}, v{vMp}, v{vT0}")
            A(f"v_sub_f32 v{vT1}, v{vMp}, v{vM[0]}")
            A(f"v_exp_f32 v{vAl+t}, v{vT1}")
            A(f"v_mov_b32 v{vMp}, v{vM[0]}")
            A(f"v_mov_b32 v{vM[1]}, v{vM[0]}")
            A(f"v_mov_b32 v{vA[0]}, v{vAl+t}")
            A(f"v_mov_b32 v{vA[1]}, v{vAl+t}")
            A(f"v_permlane32_swap_b32 v{vM[0]}, v{vM[1]}")
            A(f"v_permlane32_swap_b32 v{vA[0]}, v{vA[1]}")
        return f
    def sregs(b): return [S(b, h, T, r) for h in range(2) for T in range(2) for r in range(4)]
    def sfma(t):
        def f():
            b = t & 1
            for i, r in enumerate(sregs(b)): A(f"v_fma_f32 v{r}, v{r}, s48, -v{vM[i>>3]}")
            for r in sregs(b)[:4]: A(f"v_exp_f32 v{r}, v{r}")
        return f
    def sexp(t, lo, hi):
        def f():
            for r in sregs(t & 1)[lo:hi]: A(f"v_exp_f32 v{r}, v{r}")
        return f
    def spack(t):
        def f():
            b = t & 1
            for h in range(2):
                for u in range(4):
                    T, x = u >> 1, u & 1
                    A(f"v_cvt_pk_bf16_f32 v{P(h,u)}, v{S(b,h,T,2*x)}, v{S(b,h,T,2*x+1)}")
            for h in range(2):
                for u in range(4): A(f"v_accvgpr_write_b32 a{aP(t,h,u)}, v{P(h,u)}")
        return f
    def lsum(t):
        def f():
            b = t & 1
            for h in range(2): A(f"v_fma_f32 v{vL[h]}, v{vL[h]}, v{vA[h]}, v{S(b,h,0,0)}")
            for idx in range(1, 8):
                for h in range(2): A(f"v_add_f32 v{vL[h]}, v{vL[h]}, v{S(b,h,idx>>2,idx&3)}")
        return f
    for t in range(NT):
        s0 = 8 * t + B
        at(s0, kread(t, 0))
        ex = [f"v_exp_f32 v{r}, v{r}" for r in sregs((t - 1) & 1)[12:16]] if t > 0 else None
        at(s0 + 1, kmma(t, 0, ex))
        at(s0 + 4, kread(t, 1))
        at(s0 + 5, kmma(t, 1))
        at(s0 + 6, smax(t))
        at(s0 + 7, sfma(t))
        at(s0 + 8, sexp(t, 4, 12))
        if t == NT - 1: at(s0 + 9, sexp(t, 12, 16))
        at(s0 + 10, spack(t))
        at(s0 + 11, lsum(t))
    def perm(t, j, u):
        T, x, w = u >> 1, u & 1, j >> 1
        n = 2 * t + T
        REQ(('ld', NS + 4 * n + 2 * x + 1))
        A(f"v_perm_b32 v{VT(j,u)}, v{Vb(n,2*x+1,w)}, v{Vb(n,2*x,w)}, {'s49' if j%2==0 else 's50'}")
    def v1(t, i):
        def f():
            if t > 0:
                if i == 0:
                    A(f"v_mov_b32 v{vA[0]}, v{vAl+t}\nv_mov_b32 v{vA[1]}, v{vAl+t}")
                    A(f"v_permlane32_swap_b32 v{vA[0]}, v{vA[1]}")
                for j in (2 * i, 2 * i + 1):
                    for h in range(2):
                        for r in (0, 2):
                            A(f"v_pk_mul_f32 {vr(O(h,j,r),2)}, {vr(O(h,j,r),2)}, {vr(vA[h],2)} op_sel_hi:[1,0]")
            for j in (2 * i, 2 * i + 1):
                for u in (0, 1): perm(t, j, u)
        return f
    def pv(t, j):
        for h in range(2):
            cin = '0' if t == 0 else vr(O(h, j))
            A(f"v_mfma_f32_16x16x32_bf16 {vr(O(h,j))}, {vr(VT(j))}, {ar(aP(t,h))}, {cin}")
    def v2(t, i):
        def f():
            for j in (2 * i, 2 * i + 1):
                for u in (2, 3): perm(t, j, u)
            for j in (2 * i, 2 * i + 1): pv(t, j)
        return f
    def v2last(t):
        def f():
            for j in range(8): perm(t, j, 2)
            perm(t, 0, 3); perm(t, 1, 3)
            for j in range(8):
                pv(t, j)
                if j + 2 < 8: perm(t, j + 2, 3)
        return f
    def stats():
        A(f"v_permlane32_swap_b32 v{vL[0]}, v{vL[1]}")
        A(f"v_add_f32 v{vT0}, v{vL[0]}, v{vL[1]}")
        A(f"v_mov_b32 v{vT1}, v{vT0}")
        A(f"v_permlane16_swap_b32 v{vT0}, v{vT1}")
        A(f"v_add_f32 v{vT0}, v{vT0}, v{vT1}")
        A(f"s_lshl_b32 s46, s40, 9\ns_add_u32 s46, s46, {LDS_ST}")
        A(f"v_lshl_add_u32 v{vT1}, v0, 3, s46")
        A(f"ds_write_b64 v{vT1}, v[{vMp}:{vMp+1}]")
        A(f"v_add_u32 v1, s47, v{vVoff}")
        A("s_lshr_b32 s53, s40, 1       ; h\ns_and_b32 s54, s40, 1     ; jh")
        A(f"s_lshl_b32 s46, s53, 8\ns_add_u32 s46, s46, {LDS_ST}")
        A(f"v_and_b32 v2, 15, v0\nv_lshl_add_u32 v2, v2, 3, s46")
        A(f"s_lshl_b32 s46, s40, 12\nv_add_u32 v3, s46, v{vVoff}")
        A(f"v_lshlrev_b32 v4, 3, v0")
        A(f"v_mov_b32 v5, {LDS_FLAG}")
        A("v_and_b32 v6, 15, v0\nv_lshlrev_b32 v6, 8, v6\nv_lshrrev_b32 v7, 4, v0\nv_lshl_add_u32 v6, v7, 6, v6")
        A("s_add_u32 s56, s63, 4096")
        A(f"s_xor_b32 s57, s2, {1 if pairmap=='adj' else 128}\ns_mul_i32 s57, s57, 20992\ns_add_u32 s57, s57, s55\ns_add_u32 s58, s57, 4096")
        if gpad: A("s_and_b32 s59, s41, 3\ns_lshl_b32 s59, s59, 3\ns_lshl_b32 s60, 1, s59\ns_and_b32 s61, s41, 0xfc\ns_add_u32 s61, s61, 128")
        else: A("s_and_b32 s59, s41, 1\ns_lshl_b32 s59, s59, 4\ns_lshl_b32 s60, 1, s59\ns_lshr_b32 s61, s41, 1\ns_lshl_b32 s61, s61, 2")
        A("v_mov_b32 v7, s60\nv_mov_b32 v8, s61")
        A("s_lshl_b32 s46, s53, 12\ns_add_u32 s46, s46, s51\ns_lshl_b32 s62, s54, 3\ns_add_u32 s62, s46, s62")
    at(NS + B + 4 + 8, stats)
    for t in range(NT):
        s0 = NS + 8 * t + B
        for i in range(4): at(s0 + i, v1(t, i))
        if t < NT - 1:
            for i in range(4): at(s0 + 4 + i, v2(t, i))
        else: at(s0 + 4, v2last(t))
    last = max(work)
    for k in range(last + 1):
        if k < 2 * NS:
            n, i = (k % NS) // 4, k % 4
            if k < NS:
                if i == 0 and n > 0:
                    A(f"s_add_u32 s44, s44, 0x8000\ns_add_u32 m0, s47, {(n%4)*4096}")
            elif i == 0 and n > 0: A("s_add_u32 s45, s45, 0x8000")
            if k >= W: REQ(('ld', k - W))
            if k < NS: VM(f"buffer_load_dwordx4 v{vKld[i]}, {sK}, s44 offen offset:{i*1024} {flags} lds", ('ld', k))
            else: VM(f"buffer_load_dwordx4 {vr(Vb(n,i))}, v{vVoff}, {sV}, s45 offen offset:{i*1024} {flags}", ('ld', k))
        if stamp and k == NS: STAMP(1)
        for f in work.get(k, []): f()
    STAMP(2)
    if stamp: A("s_memtime s[82:83]")
    for qd in range(16):
        h, j = qd >> 3, qd & 7
        qq = (qd & 1) * 8 + (qd >> 1)
        A(f"ds_write_b128 v1, {vr(vO+4*qq)} offset:{qq*1024}")
    A("s_waitcnt lgkmcnt(0)\ns_barrier")
    vSt = 24; vX = 160
    for w in range(4): A(f"ds_read_b64 v[{vSt+2*w}:{vSt+2*w+1}], v2 offset:{w*512}")
    for w in range(4):
        for i in range(4): A(f"ds_read_b128 {vr(vX+(w*4+i)*4)}, v3 offset:{w*16384+i*1024}")
    A("s_waitcnt lgkmcnt(15)")
    vMx = 32; vLs = 33; vF = 34
    A(f"v_max3_f32 v{vMx}, v{vSt}, v{vSt+2}, v{vSt+4}")
    A(f"v_max_f32 v{vMx}, v{vMx}, v{vSt+6}")
    for w in range(4): A(f"v_sub_f32 v{vF+w}, v{vSt+2*w}, v{vMx}")
    for w in range(4): A(f"v_exp_f32 v{vF+w}, v{vF+w}")
    A(f"v_mul_f32 v{vLs}, v{vF}, v{vSt+1}")
    for w in range(1, 4): A(f"v_fmac_f32 v{vLs}, v{vF+w}, v{vSt+2*w+1}")
    vAcc = 40
    A("s_waitcnt lgkmcnt(12)")
    for i in range(16): A(f"v_mul_f32 v{vAcc+i}, v{vF}, v{vX+i}")
    for w in range(1, 4):
        A(f"s_waitcnt lgkmcnt({12-4*w})")
        for i in range(16): A(f"v_fmac_f32 v{vAcc+i}, v{vF+w}, v{vX+w*16+i}")
    STAMP(3)
    for i in range(4):
        A(f"buffer_store_dwordx4 {vr(vAcc+4*i)}, v{vVoff}, {sWs}, s63 offen offset:{i*1024} sc1")
    A(f"buffer_store_dwordx2 v[{vMx}:{vMx+1}], v4, {sWs}, s56 offen sc1")
    A("s_waitcnt vmcnt(0)\ns_barrier")
    STAMP(4)
    A("s_cmp_lg_u32 s40, 0\ns_cbranch_scc1 L_noatomic")
    A("s_mov_b64 exec, 1")
    A(f"buffer_atomic_add v7, v8, {sDbg}, 0 offen sc0")
    A("s_waitcnt vmcnt(0)")
    A(f"v_lshrrev_b32 v7, s59, v7\nv_and_b32 v7, 0xff, v7")
    A(f"ds_write_b32 v5, v7")
    A("s_waitcnt lgkmcnt(0)")
    A("s_mov_b64 exec, -1")
    A("L_noatomic:\ns_barrier")
    A(f"ds_read_b32 v7, v5")
    A("s_waitcnt lgkmcnt(0)")
    A("v_readfirstlane_b32 s59, v7")
    STAMP(5)
    A("s_cmp_eq_u32 s59, 0\ns_cbranch_scc1 L_fin")
    vY = 56
    A(f"buffer_load_dwordx2 v[10:11], v4, {sWs}, s58 offen sc1")
    for i in range(4):
        A(f"buffer_load_dwordx4 {vr(vY+4*i)}, v{vVoff}, {sWs}, s57 offen offset:{i*1024} sc1")
    A("s_waitcnt vmcnt(4)")
    A(f"v_max_f32 v12, v{vMx}, v10")
    A(f"v_sub_f32 v13, v{vMx}, v12\nv_sub_f32 v14, v10, v12")
    A("v_exp_f32 v13, v13\nv_exp_f32 v14, v14")
    A(f"v_mul_f32 v15, v13, v{vLs}\nv_mul_f32 v16, v14, v11\nv_add_f32 v15, v15, v16")
    A("v_rcp_f32 v15, v15")
    A("v_mul_f32 v13, v13, v15\nv_mul_f32 v14, v14, v15")
    for i in range(16): A(f"v_mul_f32 v{vAcc+i}, v13, v{vAcc+i}")
    A("s_waitcnt vmcnt(0)")
    for i in range(16): A(f"v_mul_f32 v{vY+i}, v14, v{vY+i}")
    for i in range(16): A(f"v_add_f32 v{vAcc+i}, v{vAcc+i}, v{vY+i}")
    for r in range(4):
        A(f"v_cvt_pk_bf16_f32 v{72+2*r}, v{vAcc+0*4+r}, v{vAcc+1*4+r}")
        A(f"v_cvt_pk_bf16_f32 v{73+2*r}, v{vAcc+2*4+r}, v{vAcc+3*4+r}")
    for r in range(4):
        A(f"buffer_store_dwordx2 v[{72+2*r}:{73+2*r}], v6, {sOut}, s62 offen offset:{r*16} {oflags}")
    if stamp: A("s_waitcnt vmcnt(0)")
    STAMP(6)
    A("L_fin:")
    if gpad:
        A("s_waitcnt vmcnt(0) lgkmcnt(0)\ns_not_b32 s88, s84\nv_mov_b32 v100, s88\nv_mov_b32 v102, s84\nv_mov_b32 v110, 0\ns_mov_b64 exec, 1")
        A("buffer_atomic_umax v100, v110, s[36:39], 0 offen\nbuffer_atomic_umax v102, v110, s[36:39], 0 offen offset:4\ns_waitcnt vmcnt(0)")
        A(f"L_pad0:\ns_memrealtime s[86:87]\ns_waitcnt lgkmcnt(0)\ns_sub_u32 s86, s86, s84\ns_cmp_lt_u32 s86, {(padto-25)*100}\ns_cbranch_scc1 L_pad0")
        A("buffer_load_dword v101, v110, s[36:39], 0 offen sc1\ns_waitcnt vmcnt(0)\nv_readfirstlane_b32 s84, v101\ns_nop 3\ns_not_b32 s84, s84")
    if padto:
        A(f"s_waitcnt vmcnt(0)\nL_pad:\ns_memrealtime s[86:87]\ns_waitcnt lgkmcnt(0)\ns_sub_u32 s86, s86, s84\ns_cmp_lt_u32 s86, {padto*100}\ns_cbranch_scc1 L_pad")
    if stamp:
        A("s_waitcnt lgkmcnt(0)")
        A("s_lshl_b32 s46, s2, 2\ns_add_u32 s46, s46, s40\ns_lshl_b32 s46, s46, 6\ns_add_u32 s46, s46, 0x600000")
        for i in range(7): A(f"v_mov_b32 v{100+i}, s{64+2*i}")
        A("s_getreg_b32 s47, hwreg(HW_REG_XCC_ID)\nv_mov_b32 v107, s47")
        A("s_sub_u32 s82, s82, s80\nv_mov_b32 v108, s82\nv_mov_b32 v109, 0x7fffffff")
        A("v_mov_b32 v110, 0\ns_mov_b64 exec, 1")
        A("buffer_store_dwordx4 v[100:103], v110, s[32:35], s46 offen")
        A("buffer_store_dwordx4 v[104:107], v110, s[32:35], s46 offen offset:16")
        A("buffer_store_dwordx2 v[108:109], v110, s[32:35], s46 offen offset:32")
    A("L_end:\ns_endpgm")
    body, added = fix(o)
    head = HEADER + f"; @launch grid=({NWG},1,1) block=({NW*64},1,1) lds={lds}\n" + \
        f'.amdgcn_target "amdgcn-amd-amdhsa--gfx950"\n.text\n.globl {KN}\n.p2align 8\n.type {KN},@function\n{KN}:\n'
    tail = f"""
.section .rodata,"a"
.p2align 6
.amdhsa_kernel {KN}
  .amdhsa_next_free_vgpr {nv + 256}
  .amdhsa_next_free_sgpr 96
  .amdhsa_accum_offset {nv}
  .amdhsa_group_segment_fixed_size 0
  .amdhsa_kernarg_size 48
  .amdhsa_user_sgpr_count 2
  .amdhsa_user_sgpr_kernarg_segment_ptr 1
  .amdhsa_system_sgpr_workgroup_id_x 1
.end_amdhsa_kernel
"""
    open(path, 'w').write(head + "\n".join(body) + tail)
    print(f"{path}: {len(body)} lines, {added} nop states added", file=sys.stderr)
if __name__ == "__main__":
    kw = {}
    for a in sys.argv[2:]:
        k, v = a.split('=')
        kw[k] = int(v) if v.lstrip('-').isdigit() else v.replace('+', ' ')
    gen(sys.argv[1], **kw)
```

```python
import re
TRANS = ('v_exp_f32','v_log_f32','v_rcp_f32','v_rsq_f32','v_sqrt_f32','v_sin_f32','v_cos_f32')
def regs(op):
    op = op.strip().lstrip('-')
    if op.startswith('abs('): op = op[4:-1]
    op = op.strip('|')
    m = re.fullmatch(r'([vas])(\d+)', op)
    if m: return [(m.group(1), int(m.group(2)))]
    m = re.fullmatch(r'([vas])\[(\d+):(\d+)\]', op)
    if m: return [(m.group(1), i) for i in range(int(m.group(2)), int(m.group(3)) + 1)]
    if op in ('m0',): return [('m', 0)]
    if op == 'vcc': return [('vcc', 0)]
    if op == 'exec': return [('exec', 0)]
    return []
class I:
    def __init__(self, text):
        self.text = text
        t = text.split(';')[0].strip()
        self.label = t.endswith(':') or t.startswith('.') or not t
        self.op = ''; self.w = []; self.r = []; self.kind = 'none'; self.srcC = []; self.srcAB = []; self.states = 0; self.data = []
        if self.label: return
        parts = t.split(None, 1)
        self.op = op = parts[0]
        args = parts[1] if len(parts) > 1 else ''
        ops = [a.strip() for a in re.split(r',(?![^\[]*\])', args)] if args else []
        if ops:
            last = ops[-1].split()
            self.mods = last[1:]
            ops[-1] = last[0] if last else ''
        else: self.mods = []
        self.states = 1
        if op == 's_nop': self.states = int(ops[0], 0) + 1; self.kind = 'salu'; return
        R = lambda l: [x for o in l for x in regs(o)]
        if op.startswith('v_mfma'):
            self.kind = 'mfma'; self.w = regs(ops[0]); self.srcAB = R(ops[1:3]); self.srcC = regs(ops[3]); self.r = self.srcAB + self.srcC
            self.passes = 4 if '16x16x32' in op else 8
        elif op.startswith('v_'):
            self.kind = 'valu'
            if 'permlane' in op and 'swap' in op: self.w = R(ops[:2]); self.r = R(ops[:2])
            else:
                self.w = regs(ops[0]); self.r = R(ops[1:])
                if op.startswith('v_fmac') or op.startswith('v_pk_fmac'): self.r += self.w
                if op.startswith('v_cndmask') and len(ops) == 3: self.r.append(('vcc', 0))
        elif op.startswith('buffer_') or op.startswith('global_'):
            self.kind = 'vmem'
            if 'lds' in self.mods: self.r = R(ops) + [('m', 0)]; self.dma = True
            elif 'store' in op: self.r = R(ops); self.data = regs(ops[0]) if op.startswith('buffer_') else regs(ops[1])
            elif 'atomic' in op: self.r = R(ops); self.w = regs(ops[0]) if 'sc0' in self.mods else []
            else: self.w = regs(ops[0]); self.r = R(ops[1:])
        elif op.startswith('ds_'):
            self.kind = 'ds'
            if 'read' in op: self.w = regs(ops[0]); self.r = R(ops[1:])
            else: self.r = R(ops)
        elif op.startswith('s_'):
            self.kind = 'salu'
            if op.startswith(('s_cmp', 's_cbranch', 's_branch', 's_waitcnt', 's_barrier', 's_endpgm', 's_setprio', 's_bitcmp', 's_sleep')): self.r = R(ops)
            else: self.w = regs(ops[0]) if ops else []; self.r = R(ops[1:])
def need(p, c):
    n = 0
    pw = set(p.w);
    if p.kind == 'mfma':
        big = {4: 8, 8: 12}[p.passes]
        if c.kind == 'mfma':
            if pw & set(c.srcAB): n = max(n, big)
            if pw & set(c.srcC) and p.w != c.srcC: n = max(n, {4: 6, 8: 10}[p.passes])
            elif pw & set(c.w) and p.w != c.srcC: n = max(n, {4: 6, 8: 10}[p.passes])
        elif c.kind in ('valu', 'vmem', 'ds'):
            if pw & (set(c.r) | set(c.w)): n = max(n, big)
        if c.kind == 'valu' and set(p.srcC) & set(c.w): n = max(n, {4: 3, 8: 7}[p.passes])
    if p.kind == 'valu':
        vw = {x for x in pw if x[0] in 'va'}
        sw = {x for x in pw if x[0] in ('s', 'vcc')}
        if c.kind == 'mfma' and vw & set(c.r): n = max(n, 2)
        if c.kind == 'valu':
            if 'permlane' in c.op and vw & set(c.r): n = max(n, 2)
            if 'dpp' in c.text and vw & set(c.r): n = max(n, 2)
            if c.op in ('v_readfirstlane_b32', 'v_readlane_b32') and vw & set(c.r): n = max(n, 1)
            if p.op in TRANS and c.op not in TRANS and vw & set(c.r): n = max(n, 1)
            if p.op in TRANS and c.op in TRANS and vw & set(c.r): n = max(n, 1)
            if sw & set(c.r): n = max(n, 2)
            if 'op_sel' in p.text and vw & (set(c.r)): n = max(n, 1)
        if c.kind == 'vmem' and sw & set(c.r): n = max(n, 5)
        if c.kind == 'salu' and sw & set(c.r): n = max(n, 2)
        if ('exec', 0) in pw: n = max(n, 5)
    if p.kind == 'salu' and ('m', 0) in pw and c.kind == 'vmem' and ('m', 0) in c.r: n = max(n, 1)
    if p.kind == 'vmem' and len(p.data) >= 3 and set(p.data) & set(c.w): n = max(n, 2)
    return n
def fix(lines):
    out = []; hist = []
    added = 0
    for ln in lines:
        for t in ln.split('\n'):
            c = I(t)
            if c.label:
                out.append(t)
                lab = t.split(';')[0].strip().rstrip(':')
                for bi, p in enumerate(hist):
                    if p.op.startswith(('s_cbranch', 's_branch')) and p.text.split(';')[0].split()[-1] == lab:
                        for q in hist[bi + 1:]: q.states = 0
                        break
                continue
            req = 0; dist = 0
            for p in reversed(hist):
                if dist >= 20: break
                k = need(p, c)
                if k > dist: req = max(req, k - dist)
                dist += p.states
            while req > 0:
                k = min(req, 16)
                nop = I(f"s_nop {k-1}"); out.append(nop.text); hist.append(nop); req -= k; added += k
            out.append(t); hist.append(c)
            if len(hist) > 400: hist = hist[-300:]
    return out, added
```

```python
import sys, struct, math
from hz import fix
KN = "standalone__gqa_softmax__sampling_kernel"
HEADER = """; Kernarg layout for this problem (48 bytes, ptrs only, base s[0:1]):
"""
def f2u(f): return struct.unpack('<I', struct.pack('<f', f))[0]

def gen(path, W=5, flags='nt', pairmap='adj', stamp=0, touch=0, NT=32, pre=0, padto=0, oflags='', gpad=0, wk='', wv='', w2=0, x2=0, RING=4, cut=0, nocomp=0, force=0, late=0, clrslot=-1, noclr=0, notok=0, nospec=0, P1=6):
    NW = 4; NWG = 256
    o = []; A = o.append
    vm = []; st = {'done': 0}
    def VM(text, tag): A(text); vm.append(tag)
    def WAITN(n):
        A(f"s_waitcnt vmcnt({n})"); st['done'] = max(st['done'], len(vm) - n)
    def REQ(tag):
        idx = len(vm) - 1 - vm[::-1].index(tag)
        if idx >= st['done']: WAITN(len(vm) - idx - 1)
    LDS_ST = 65536; LDS_BN = 65536 + 2048
    LDS_FL = LDS_BN + 4 * 2176
    lds = LDS_FL + 64
    SLOT = 5120; WS_A = 0x500000; WS_FB = 0x800000; TOKEN = 0x13579bdf
    vKld = [1, 2, 3, 4]; vKrd = [5, 6, 7, 8]; vVoff = 9; vQoff = 10
    vMp, vT0, vT1 = 12, 13, 14
    vM = [15, 11]; vA = [16, 18]; vL = [20, 21]; vTmp = 22
    vAl = 24
    vQ = 56; vVT = 56
    vKF = 88; vS = 120; vO = 88
    vP = 152
    vV = 160
    nv = 160 + 16 * RING
    S = lambda b, h, T, r=0: vS + b * 16 + (h * 2 + T) * 4 + r
    P = lambda h, u=0: vP + h * 4 + u
    aP = lambda t, h, u=0: t * 8 + h * 4 + u
    VT = lambda j, u=0: vVT + j * 4 + u
    O = lambda h, j, r=0: vO + (h * 8 + j) * 4 + r
    Vb = lambda n, i, w=0: vV + (n % RING) * 16 + i * 4 + w
    KF = lambda T, s: vKF + (T * 4 + s) * 4
    Q = lambda h, s: vQ + (h * 4 + s) * 4
    vr = lambda r, n=4: f"v[{r}:{r+n-1}]"
    ar = lambda r, n=4: f"a[{r}:{r+n-1}]"
    sK, sV, sQ, sOut, sWs, sDbg = 's[16:19]', 's[20:23]', 's[24:27]', 's[28:31]', 's[32:35]', 's[36:39]'
    def STAMP(i):
        if stamp: A(f"s_memrealtime s[{64+2*i}:{65+2*i}]")
    A(f"s_cmp_ge_u32 s2, {NWG}\ns_cbranch_scc1 L_end")
    A("s_load_dwordx8 s[4:11], s[0:1], 0\ns_load_dwordx4 s[12:15], s[0:1], 32")
    STAMP(0)
    if padto: A("s_memrealtime s[84:85]")
    if stamp:
        A("s_memtime s[80:81]")
        for i in range(1, 8): A(f"s_mov_b64 s[{64+2*i}:{65+2*i}], 0")
    if late:
        A(f"s_bitcmp1_b32 s2, 0\ns_cbranch_scc0 L_go\ns_memrealtime s[84:85]\ns_waitcnt lgkmcnt(0)\nL_late:\ns_memrealtime s[86:87]\ns_waitcnt lgkmcnt(0)\ns_sub_u32 s86, s86, s84\ns_cmp_lt_u32 s86, {late*100}\ns_cbranch_scc1 L_late\nL_go:")
    A("v_lshrrev_b32 v1, 6, v0\nv_and_b32 v0, 63, v0")
    A("v_and_b32 v11, 15, v0           ; p / m / n")
    A("v_readfirstlane_b32 s40, v1")
    A("v_lshrrev_b32 v12, 4, v0        ; q / g")
    A("v_lshlrev_b32 v13, 2, v12       ; 4q")
    A("v_xor_b32 v13, v13, v11         ; p ^ 4q")
    A("v_lshlrev_b32 v14, 8, v12       ; q*256")
    for i in range(4):
        A(f"v_xor_b32 v15, {i}, v13\nv_lshl_add_u32 v{vKld[i]}, v15, 4, v14")
    if pairmap == 'adj':
        A("s_lshr_b32 s41, s2, 1\ns_and_b32 s42, s2, 1")
    else:
        A("s_and_b32 s41, s2, 127\ns_lshr_b32 s42, s2, 7")
    A("s_lshl_b32 s43, s42, 2\ns_add_u32 s43, s43, s40      ; widx")
    A("s_lshl_b32 s44, s43, 12      ; K soffset\ns_mov_b32 s45, s44")
    A("s_lshl_b32 s46, s41, 21")
    A("s_lshl_b32 s47, s40, 14")
    A("s_mov_b32 s18, 0x200000\ns_mov_b32 s19, 0x20000")
    A("s_mov_b32 m0, s47")
    A("s_waitcnt lgkmcnt(0)")
    A("s_add_u32 s16, s6, s46\ns_addc_u32 s17, s7, 0")
    if pre:
        A("s_add_u32 s20, s8, s46\ns_addc_u32 s21, s9, 0\ns_mov_b32 s22, 0x200000\ns_mov_b32 s23, 0x20000")
        A(f"v_lshlrev_b32 v{vVoff}, 4, v0")
        for nm, srd in (('v', sV), ('k', sK)):
            A(f"s_mov_b32 s60, s44\ns_mov_b32 s61, 64\nL_pre{nm}:")
            for i in range(4):
                A(f"s_waitcnt vmcnt({W-1})\nbuffer_load_dwordx4 v[{160+4*i}:{163+4*i}], v{vVoff}, {srd}, s60 offen offset:{i*1024} {flags}")
            A(f"s_add_u32 s60, s60, 0x8000\ns_sub_u32 s61, s61, 1\ns_cmp_eq_u32 s61, 0\ns_cbranch_scc0 L_pre{nm}")
        A("s_waitcnt vmcnt(0)")
    NS = NT * 8
    wk = str(wk) or str(W); wv = str(wv) or str(W)
    win = [int(wk[k % len(wk)], 16) for k in range(NS)] + [int(wv[k % len(wv)], 16) for k in range(NS)]
    if w2:
        for k in range(2 * NS - x2, 2 * NS): win[k] = w2
    win += [win[-1]] * 64
    def ready(idx):
        k = idx + 1
        while k - win[k] < idx: k += 1
        return k
    RK = [ready(4 * n + 3) for n in range(2 * NT)]
    RV = [ready(NS + 4 * n + 3) for n in range(2 * NT)]
    work = {}
    def at(slot, fn): work.setdefault(slot, []).append(fn)
    def setup2():
        A("s_add_u32 s20, s8, s46\ns_addc_u32 s21, s9, 0\ns_mov_b32 s22, 0x200000\ns_mov_b32 s23, 0x20000")
        A("s_mov_b32 s24, s4\ns_mov_b32 s25, s5\ns_mov_b32 s26, 0x100000\ns_mov_b32 s27, 0x20000")
        A("s_lshl_b32 s51, s41, 13\ns_add_u32 s52, s51, 4096")
        A(f"v_lshlrev_b32 v15, 4, v12\nv_lshl_add_u32 v{vQoff}, v11, 8, v15     ; n*256 + g*16")
        for h in range(2):
            for s in range(4):
                VM(f"buffer_load_dwordx4 {vr(Q(h,s))}, v{vQoff}, {sQ}, {'s51' if h==0 else 's52'} offen offset:{s*64}", 'q')
        A(f"v_lshlrev_b32 v{vVoff}, 4, v0")
        A("s_mov_b32 s28, s10\ns_mov_b32 s29, s11\ns_mov_b32 s30, 0x100000\ns_mov_b32 s31, 0x20000")
        A("s_mov_b32 s32, s14\ns_mov_b32 s33, s15\ns_mov_b32 s34, 0x1000000\ns_mov_b32 s35, 0x20000")
        A("s_mov_b32 s36, s12\ns_mov_b32 s37, s13\ns_mov_b32 s38, 256\ns_mov_b32 s39, 0x20000")
        px = 1 if pairmap == 'adj' else 128
        A("s_lshl_b32 s55, s2, 2\ns_add_u32 s55, s55, s40")
        A(f"s_xor_b32 s56, s55, {px*4}")
        A(f"s_mul_i32 s63, s55, {SLOT}")
        A(f"s_mul_i32 s57, s56, {SLOT}")
        A(f"s_add_u32 s58, s57, 4096\ns_add_u32 s89, s63, 4096")
        A("s_and_b32 s59, s41, 1\ns_lshl_b32 s59, s59, 4\ns_lshl_b32 s60, 1, s59\ns_lshr_b32 s61, s41, 1\ns_lshl_b32 s61, s61, 2")
        A(f"v_mov_b32 v{vTmp}, 0\nv_lshlrev_b32 v{vTmp+1}, 3, v0")
        A(f"s_xor_b32 s92, s2, {px}\ns_lshl_b32 s92, s92, 7\ns_add_u32 s92, s92, {WS_A}")
        A(f"s_lshl_b32 s93, s2, 7\ns_add_u32 s93, s93, {WS_A}")
        VM(f"buffer_load_dword v{vV}, v{vTmp}, {sWs}, s92 offen sc1", 'f0')
        VM(f"buffer_load_dword v{vV+1}, v{vTmp}, {sWs}, s93 offen sc1", 'f0')
        if touch:
            VM(f"buffer_load_dword v{vP+4}, v{vTmp}, {sV}, s45 offen {flags}", 'x')
            VM(f"buffer_load_dword v{vP+4}, v{vTmp}, {sOut}, s51 offen nt", 'x')
        A("v_and_b32 v13, 3, v11\nv_lshlrev_b32 v13, 2, v13\nv_lshrrev_b32 v14, 2, v11\nv_add_u32 v13, v13, v14")
        A("v_lshlrev_b32 v13, 8, v13\nv_add_u32 v13, s47, v13")
        A("v_xor_b32 v14, v12, v11      ; g ^ m")
        for s in range(4):
            A(f"v_xor_b32 v15, {4*s}, v14\nv_lshl_add_u32 v{vKrd[s]}, v15, 4, v13")
        c = math.log2(math.e) / math.sqrt(128.0)
        A(f"s_mov_b32 s48, 0x{f2u(c):08x}     ; log2(e)/sqrt(128)")
        A("s_mov_b32 s49, 0x05040100\ns_mov_b32 s50, 0x07060302")
        A(f"v_mov_b32 v{vMp}, 0xff800000")
        A(f"v_mov_b32 v{vL[0]}, 0\nv_mov_b32 v{vL[1]}, 0")
    at(win[0] - 1, setup2)
    vPoll = vQoff
    def flag0():
        REQ('f0')
        A(f"v_readfirstlane_b32 s94, v{vV}\nv_readfirstlane_b32 s95, v{vV+1}\ns_nop 1\ns_add_u32 s95, s95, 1")
    at(19, flag0)
    def poll(track):
        t = f"buffer_load_dword v{vPoll}, v{vTmp}, {sWs}, s92 offen sc1"
        if track: VM(t, 'poll')
        else: A(t)
    def pollres(dst):
        A(f"v_readfirstlane_b32 {dst}, v{vPoll}")
        A(f"s_xor_b32 {dst}, {dst}, s94")
    def cntres(dst):
        A(f"v_readfirstlane_b32 {dst}, v{vPoll}")
        A(f"s_lshr_b32 {dst}, {dst}, s59\ns_and_b32 {dst}, {dst}, 0xffff")
    if cut != 1: at(2 * NS - P1, lambda: poll(True))
    def kread(t, T):
        def f():
            n = 2 * t + T
            REQ(('ld', 4 * n + 3))
            for s in range(4):
                A(f"ds_read_b128 {vr(KF(T,s))}, v{vKrd[s]} offset:{(n%4)*4096}")
        return f
    def kmma(t, T, extra=None):
        def f():
            REQ('q')
            A("s_waitcnt lgkmcnt(0)")
            b = t & 1; k = 0
            for s in range(4):
                for h in range(2):
                    cin = '0' if s == 0 else vr(S(b, h, T))
                    A(f"v_mfma_f32_16x16x32_bf16 {vr(S(b,h,T))}, {vr(KF(T,s))}, {vr(Q(h,s))}, {cin}")
                    if extra and k < len(extra) and (s * 2 + h) % 2 == 1: A(extra[k]); k += 1
        return f
    def smax(t):
        def f():
            b = t & 1; tt = [vT0, vT1]
            for h in range(2): A(f"v_max3_f32 v{tt[h]}, v{S(b,h,0,0)}, v{S(b,h,0,1)}, v{S(b,h,0,2)}")
            for h in range(2): A(f"v_max3_f32 v{tt[h]}, v{tt[h]}, v{S(b,h,0,3)}, v{S(b,h,1,0)}")
            for h in range(2): A(f"v_max3_f32 v{tt[h]}, v{tt[h]}, v{S(b,h,1,1)}, v{S(b,h,1,2)}")
            for h in range(2): A(f"v_max_f32 v{tt[h]}, v{tt[h]}, v{S(b,h,1,3)}")
            A(f"v_permlane32_swap_b32 v{vT0}, v{vT1}")
            A(f"v_max_f32 v{vT0}, v{vT0}, v{vT1}")
            A(f"v_mov_b32 v{vT1}, v{vT0}")
            A(f"v_permlane16_swap_b32 v{vT0}, v{vT1}")
            A(f"v_max_f32 v{vT0}, v{vT0}, v{vT1}")
            A(f"v_mul_f32 v{vT0}, s48, v{vT0}")
            A(f"v_max_f32 v{vM[0]}, v{vMp}, v{vT0}")
            A(f"v_sub_f32 v{vT1}, v{vMp}, v{vM[0]}")
            A(f"v_exp_f32 v{vAl+t}, v{vT1}")
            A(f"v_mov_b32 v{vMp}, v{vM[0]}")
            A(f"v_mov_b32 v{vM[1]}, v{vM[0]}")
            A(f"v_mov_b32 v{vA[0]}, v{vAl+t}")
            A(f"v_mov_b32 v{vA[1]}, v{vAl+t}")
            A(f"v_permlane32_swap_b32 v{vM[0]}, v{vM[1]}")
            A(f"v_permlane32_swap_b32 v{vA[0]}, v{vA[1]}")
        return f
    def sregs(b): return [S(b, h, T, r) for h in range(2) for T in range(2) for r in range(4)]
    def sfma(t):
        def f():
            b = t & 1
            for i, r in enumerate(sregs(b)): A(f"v_fma_f32 v{r}, v{r}, s48, -v{vM[i>>3]}")
            for r in sregs(b)[:4]: A(f"v_exp_f32 v{r}, v{r}")
        return f
    def sexp(t, lo, hi):
        def f():
            for r in sregs(t & 1)[lo:hi]: A(f"v_exp_f32 v{r}, v{r}")
        return f
    def spack(t):
        def f():
            b = t & 1
            for h in range(2):
                for u in range(4):
                    T, x = u >> 1, u & 1
                    A(f"v_cvt_pk_bf16_f32 v{P(h,u)}, v{S(b,h,T,2*x)}, v{S(b,h,T,2*x+1)}")
            for h in range(2):
                for u in range(4): A(f"v_accvgpr_write_b32 a{aP(t,h,u)}, v{P(h,u)}")
        return f
    def lsum(t):
        def f():
            b = t & 1
            for h in range(2): A(f"v_fma_f32 v{vL[h]}, v{vL[h]}, v{vA[h]}, v{S(b,h,0,0)}")
            for idx in range(1, 8):
                for h in range(2): A(f"v_add_f32 v{vL[h]}, v{vL[h]}, v{S(b,h,idx>>2,idx&3)}")
        return f
    for t in range(NT):
        a, b_ = RK[2 * t], RK[2 * t + 1]
        assert b_ >= a + 2
        if t > 0: assert RK[2 * t - 1] + 3 < a + 1 < RK[2 * t - 1] + 6 or (RK[2*t-1] + 3, a + 1)
        assert a + 1 < 4 * (2 * t + 4) and b_ + 1 < 4 * (2 * t + 1 + 4)
        at(a, kread(t, 0))
        ex = [f"v_exp_f32 v{r}, v{r}" for r in sregs((t - 1) & 1)[12:16]] if t > 0 else None
        at(a + 1, kmma(t, 0, ex))
        at(b_, kread(t, 1))
        at(b_ + 1, kmma(t, 1))
        at(b_ + 2, smax(t))
        at(b_ + 3, sfma(t))
        at(b_ + 4, sexp(t, 4, 12))
        nxt = RK[2 * t + 2] + 1 if t < NT - 1 else b_ + 5
        assert nxt > b_ + 3
        if t == NT - 1: at(b_ + 5, sexp(t, 12, 16))
        at(max(nxt, b_ + 4) + 1, spack(t))
        at(max(nxt, b_ + 4) + 2, lsum(t))
        if t < NT - 1: assert max(nxt, b_ + 4) + 2 <= RK[2 * t + 3] + 1
    kdone = RK[2 * NT - 1] + 7
    def perm(t, j, u):
        T, x, w = u >> 1, u & 1, j >> 1
        n = 2 * t + T
        REQ(('ld', NS + 4 * n + 2 * x + 1))
        A(f"v_perm_b32 v{VT(j,u)}, v{Vb(n,2*x+1,w)}, v{Vb(n,2*x,w)}, {'s49' if j%2==0 else 's50'}")
    def v1(t, i):
        def f():
            if t > 0:
                if i == 0:
                    A(f"v_mov_b32 v{vA[0]}, v{vAl+t}\nv_mov_b32 v{vA[1]}, v{vAl+t}")
                    A(f"v_permlane32_swap_b32 v{vA[0]}, v{vA[1]}")
                for j in (2 * i, 2 * i + 1):
                    for h in range(2):
                        for r in (0, 2):
                            A(f"v_pk_mul_f32 {vr(O(h,j,r),2)}, {vr(O(h,j,r),2)}, {vr(vA[h],2)} op_sel_hi:[1,0]")
            for j in (2 * i, 2 * i + 1):
                for u in (0, 1): perm(t, j, u)
        return f
    def pv(t, j):
        for h in range(2):
            cin = '0' if t == 0 else vr(O(h, j))
            A(f"v_mfma_f32_16x16x32_bf16 {vr(O(h,j))}, {vr(VT(j))}, {ar(aP(t,h))}, {cin}")
    def v2(t, i):
        def f():
            for j in (2 * i, 2 * i + 1):
                for u in (2, 3): perm(t, j, u)
            for j in (2 * i, 2 * i + 1): pv(t, j)
        return f
    vY = 24
    def mbox_load(so_d, so_s, track=False):
        E = (lambda x: VM(x, 'y')) if track else A
        E(f"buffer_load_dwordx2 v[{vY+16}:{vY+17}], v{vTmp+1}, {sWs}, {so_s} offen sc1")
        for i in range(4): E(f"buffer_load_dwordx4 {vr(vY+4*i)}, v{vVoff}, {sWs}, {so_d} offen offset:{i*1024} sc1")
    def owrite(j):
        for h in range(2): A(f"ds_write_b128 v{1 if j < 4 else 2}, {vr(O(h,j))} offset:{(h*8+j)*1024}")
    def v2last(t):
        def f():
            for j in range(8): perm(t, j, 2)
            perm(t, 0, 3); perm(t, 1, 3)
            if cut != 1:
                REQ('poll')
                pollres('s90')
                if force in (1, 2, 3): A("s_mov_b32 s90, 0\ns_cmp_lg_u32 s90, 0")
                if force == 4: A("s_bitcmp1_b32 s40, 0\ns_cselect_b32 s90, 0, s90\ns_cmp_lg_u32 s90, 0")
                A("s_cbranch_scc0 L_nos1")
                mbox_load('s57', 's58')
                A(f"L_nos1:\nv_mov_b32 v{vPoll}, s90\nds_write_b32 v7, v{vPoll}")
            for j in range(8):
                pv(t, j)
                if j + 2 < 8: perm(t, j + 2, 3)
                if j >= 3 and cut != 1: owrite(j - 3)
            if cut != 1:
                for j in range(5, 8): owrite(j)
        return f
    def stats():
        A(f"v_permlane32_swap_b32 v{vL[0]}, v{vL[1]}")
        A(f"v_add_f32 v{vT0}, v{vL[0]}, v{vL[1]}")
        A(f"v_mov_b32 v{vT1}, v{vT0}")
        A(f"v_permlane16_swap_b32 v{vT0}, v{vT1}")
        A(f"v_add_f32 v{vT0}, v{vT0}, v{vT1}")
        A(f"s_lshl_b32 s46, s40, 9\ns_add_u32 s46, s46, {LDS_ST}")
        A(f"v_lshl_add_u32 v{vT1}, v0, 3, s46")
        A(f"ds_write_b64 v{vT1}, v[{vMp}:{vMp+1}]")
        A(f"v_add_u32 v1, s47, v{vVoff}")
        A(f"v_xor_b32 v2, 0x80, v1")
        A("s_lshr_b32 s53, s40, 1       ; h\ns_and_b32 s54, s40, 1")
        A("v_and_b32 v6, 7, v0          ; q'\nv_bfe_u32 v7, v0, 3, 1      ; jh\nv_lshrrev_b32 v8, 4, v0     ; g")
        A("s_lshl_b32 s46, s54, 3\nv_add_u32 v5, s46, v6       ; q")
        A(f"s_lshl_b32 s46, s53, 8\ns_add_u32 s46, s46, {LDS_ST}")
        A(f"v_lshl_add_u32 v3, v5, 3, s46")
        A("v_lshlrev_b32 v4, 3, v7\nv_xor_b32 v4, v4, v5\nv_lshlrev_b32 v4, 4, v4      ; (q ^ 8jh)*16")
        A("v_lshl_add_u32 v4, v8, 8, v4\nv_lshl_add_u32 v4, v7, 12, v4")
        A("s_lshl_b32 s46, s53, 13\nv_add_u32 v4, s46, v4")
        A(f"s_mul_i32 s46, s40, 2176\ns_add_u32 s46, s46, {LDS_BN}")
        A("v_mul_u32_u24 v5, 272, v6\nv_lshl_add_u32 v5, v8, 6, v5\nv_lshl_add_u32 v5, v7, 3, v5\nv_add_u32 v5, s46, v5")
        A("v_mul_u32_u24 v6, 272, v8\nv_and_b32 v7, 15, v0\nv_lshl_add_u32 v6, v7, 4, v6\nv_add_u32 v6, s46, v6")
        A(f"s_lshl_b32 s46, s40, 2\ns_add_u32 s46, s46, {LDS_FL}\nv_mov_b32 v7, s46\nv_mov_b32 v8, {LDS_FL}")
        A("s_lshl_b32 s62, s40, 11\ns_add_u32 s62, s62, s51")
    at(RV[3] + 1, stats)
    assert RV[0] > RK[2 * NT - 1] + 1
    prev = 0
    for t in range(NT):
        a = max(RV[2 * t], prev + 1)
        for i in range(4): at(a + i, v1(t, i))
        b_ = max(RV[2 * t + 1], a + 4)
        if t == 0: assert b_ > kdone, (b_, kdone)
        if t == 1: assert a > kdone
        assert a + 3 < NS + 4 * (2 * t + RING) and b_ + 3 < NS + 4 * (2 * t + 1 + RING), (t, a, b_)
        if t < NT - 1:
            for i in range(4): at(b_ + i, v2(t, i))
        else: at(b_, v2last(t))
        prev = b_ + 3
    last = max(work)
    for k in range(last + 1):
        if k < 2 * NS:
            n, i = (k % NS) // 4, k % 4
            if k < NS:
                if i == 0 and n > 0:
                    A(f"s_add_u32 s44, s44, 0x8000\ns_add_u32 m0, s47, {(n%4)*4096}")
            elif i == 0 and n > 0: A("s_add_u32 s45, s45, 0x8000")
            if k >= win[k]: REQ(('ld', k - win[k]))
            if k < NS: VM(f"buffer_load_dwordx4 v{vKld[i]}, {sK}, s44 offen offset:{i*1024} {flags} lds", ('ld', k))
            else: VM(f"buffer_load_dwordx4 {vr(Vb(n,i))}, v{vVoff}, {sV}, s45 offen offset:{i*1024} {flags}", ('ld', k))
        if stamp and k == NS: STAMP(1)
        for f in work.get(k, []):
            if nocomp == 1 and f not in (setup2, stats): continue
            if nocomp == 2 and f not in (setup2, stats) and k >= RV[0] + 8: continue
            if nocomp == 3 and f not in (setup2, stats) and k < RV[0]: continue
            f()
    if nocomp: A("s_waitcnt vmcnt(0)")
    STAMP(2)
    if stamp: A("s_memtime s[82:83]")
    if cut == 1: A("s_branch L_fin")
    A("s_waitcnt lgkmcnt(0)\ns_barrier")
    vSt = 42; vX = 160; vMx = 50; vLs = 51; vF = 52; vAcc = 60
    A("ds_read_b128 v[76:79], v8")
    for w in range(4): A(f"ds_read_b64 v[{vSt+2*w}:{vSt+2*w+1}], v3 offset:{w*512}")
    for w in range(4):
        for i in range(4): A(f"ds_read_b128 {vr(vX+(w*4+i)*4)}, v4 offset:{w*16384+i*1024}")
    A("s_waitcnt lgkmcnt(15)")
    A("v_or3_b32 v76, v76, v77, v78\nv_or_b32 v76, v76, v79")
    A(f"v_max3_f32 v{vMx}, v{vSt}, v{vSt+2}, v{vSt+4}")
    A("v_readfirstlane_b32 s91, v76")
    A(f"v_max_f32 v{vMx}, v{vMx}, v{vSt+6}")
    for w in range(4): A(f"v_sub_f32 v{vF+2*w}, v{vSt+2*w}, v{vMx}")
    for w in range(4): A(f"v_exp_f32 v{vF+2*w}, v{vF+2*w}")
    A(f"v_mul_f32 v{vLs}, v{vF}, v{vSt+1}")
    for w in range(1, 4): A(f"v_fmac_f32 v{vLs}, v{vF+2*w}, v{vSt+2*w+1}")
    A("s_waitcnt lgkmcnt(12)")
    for i in range(0, 16, 2): A(f"v_pk_mul_f32 {vr(vAcc+i,2)}, {vr(vX+i,2)}, {vr(vF,2)} op_sel_hi:[1,0]")
    for w in range(1, 4):
        A(f"s_waitcnt lgkmcnt({12-4*w})")
        for i in range(0, 16, 2): A(f"v_pk_fma_f32 {vr(vAcc+i,2)}, {vr(vX+w*16+i,2)}, {vr(vF+2*w,2)}, {vr(vAcc+i,2)} op_sel_hi:[1,0,1]")
    STAMP(3)
    if cut == 2: A("s_branch L_comb")
    if cut == 3: A("s_branch L_fin")
    A("s_cmp_lg_u32 s91, 0\ns_cbranch_scc1 L_have")
    for i in range(4):
        A(f"buffer_store_dwordx4 {vr(vAcc+4*i)}, v{vVoff}, {sWs}, s63 offen offset:{i*1024} sc1")
    A(f"buffer_store_dwordx2 v[{vMx}:{vMx+1}], v{vTmp+1}, {sWs}, s89 offen sc1")
    poll(False)
    A("s_waitcnt vmcnt(0)")
    STAMP(4)
    pollres('s90')
    if force == 2: A("s_mov_b32 s90, 0\ns_cmp_lg_u32 s90, 0")
    if force == 3: A("s_bitcmp1_b32 s40, 1\ns_cselect_b32 s90, 0, s90\ns_cmp_lg_u32 s90, 0")
    A("s_cbranch_scc0 L_nos2")
    mbox_load('s57', 's58')
    A(f"L_nos2:\nv_mov_b32 v{vPoll}, s90\nds_write_b32 v7, v{vPoll} offset:16")
    A("s_waitcnt lgkmcnt(0)\ns_barrier")
    A("ds_read_b128 v[76:79], v8 offset:16\ns_waitcnt lgkmcnt(0)")
    A("v_or3_b32 v76, v76, v77, v78\nv_or_b32 v76, v76, v79\nv_readfirstlane_b32 s91, v76")
    A("s_cmp_lg_u32 s91, 0\ns_cbranch_scc1 L_have")
    A("s_cmp_lg_u32 s40, 0\ns_cbranch_scc1 L_noatomic")
    A(f"v_mov_b32 v{vPoll}, s60\nv_mov_b32 v76, s95")
    A("s_mov_b64 exec, 1")
    A(f"buffer_store_dword v76, v{vTmp}, {sWs}, s93 offen sc1")
    A(f"buffer_atomic_add v{vPoll}, v{vTmp}, {sDbg}, s61 offen sc0")
    A("s_waitcnt vmcnt(0)")
    A(f"ds_write_b32 v8, v{vPoll} offset:32")
    A("s_waitcnt lgkmcnt(0)")
    A("s_mov_b64 exec, -1")
    A("L_noatomic:\ns_barrier")
    A(f"ds_read_b32 v{vPoll}, v8 offset:32\ns_waitcnt lgkmcnt(0)")
    STAMP(5)
    cntres('s91')
    A("s_cbranch_scc0 L_fin")
    A("L_have:")
    A("s_cmp_lg_u32 s90, 0\ns_cbranch_scc1 L_wait")
    mbox_load('s57', 's58')
    A("L_wait:\ns_waitcnt vmcnt(0)")
    A("L_comb:\ns_nop 1")
    A(f"v_max_f32 v12, v{vMx}, v{vY+16}")
    A(f"v_sub_f32 v14, v{vMx}, v12\nv_sub_f32 v16, v{vY+16}, v12")
    A("v_exp_f32 v14, v14\nv_exp_f32 v16, v16")
    A(f"v_mul_f32 v12, v14, v{vLs}\nv_mul_f32 v13, v16, v{vY+17}\nv_add_f32 v12, v12, v13")
    A("v_rcp_f32 v12, v12")
    A("v_mul_f32 v14, v14, v12\nv_mul_f32 v16, v16, v12")
    for i in range(0, 16, 2): A(f"v_pk_mul_f32 {vr(vAcc+i,2)}, {vr(vAcc+i,2)}, v[14:15] op_sel_hi:[1,0]")
    for i in range(0, 16, 2): A(f"v_pk_mul_f32 {vr(vY+i,2)}, {vr(vY+i,2)}, v[16:17] op_sel_hi:[1,0]")
    for i in range(0, 16, 2): A(f"v_pk_add_f32 {vr(vAcc+i,2)}, {vr(vAcc+i,2)}, {vr(vY+i,2)}")
    for r in range(4):
        A(f"v_cvt_pk_bf16_f32 v{80+2*r}, v{vAcc+0*4+r}, v{vAcc+1*4+r}")
        A(f"v_cvt_pk_bf16_f32 v{81+2*r}, v{vAcc+2*4+r}, v{vAcc+3*4+r}")
        A(f"ds_write_b64 v5, v[{80+2*r}:{81+2*r}] offset:{r*16}")
    A("s_waitcnt lgkmcnt(0)")
    A("ds_read_b128 v[88:91], v6\nds_read_b128 v[92:95], v6 offset:1088")
    A("s_waitcnt lgkmcnt(1)")
    A(f"buffer_store_dwordx4 v[88:91], v{vVoff}, {sOut}, s62 offen {oflags}")
    A("s_waitcnt lgkmcnt(0)")
    A(f"buffer_store_dwordx4 v[92:95], v{vVoff}, {sOut}, s62 offen offset:1024 {oflags}")
    if stamp: A("s_waitcnt vmcnt(0)")
    STAMP(6)
    A("L_fin:")
    if gpad:
        A("s_waitcnt vmcnt(0) lgkmcnt(0)\ns_not_b32 s88, s84\nv_mov_b32 v100, s88\nv_mov_b32 v102, s84\nv_mov_b32 v110, 0\ns_mov_b64 exec, 1")
        A("buffer_atomic_umax v100, v110, s[36:39], 0 offen\nbuffer_atomic_umax v102, v110, s[36:39], 0 offen offset:4\ns_waitcnt vmcnt(0)")
        A(f"L_pad0:\ns_memrealtime s[86:87]\ns_waitcnt lgkmcnt(0)\ns_sub_u32 s86, s86, s84\ns_cmp_lt_u32 s86, {(padto-25)*100}\ns_cbranch_scc1 L_pad0")
        A("buffer_load_dword v101, v110, s[36:39], 0 offen sc1\ns_waitcnt vmcnt(0)\nv_readfirstlane_b32 s84, v101\ns_nop 3\ns_not_b32 s84, s84")
    if padto:
        A(f"s_waitcnt vmcnt(0)\nL_pad:\ns_memrealtime s[86:87]\ns_waitcnt lgkmcnt(0)\ns_sub_u32 s86, s86, s84\ns_cmp_lt_u32 s86, {padto*100}\ns_cbranch_scc1 L_pad")
    if stamp:
        A("s_waitcnt lgkmcnt(0)")
        A("s_lshl_b32 s46, s2, 2\ns_add_u32 s46, s46, s40\ns_lshl_b32 s46, s46, 6\ns_add_u32 s46, s46, 0x600000")
        for i in range(7): A(f"v_mov_b32 v{100+i}, s{64+2*i}")
        A("s_getreg_b32 s47, hwreg(HW_REG_XCC_ID)\nv_mov_b32 v107, s47")
        A("s_sub_u32 s82, s82, s80\nv_mov_b32 v108, s82\nv_mov_b32 v109, 0x7fffffff")
        A("v_mov_b32 v110, 0\ns_mov_b64 exec, 1")
        A("buffer_store_dwordx4 v[100:103], v110, s[32:35], s46 offen")
        A("buffer_store_dwordx4 v[104:107], v110, s[32:35], s46 offen offset:16")
        A("buffer_store_dwordx2 v[108:109], v110, s[32:35], s46 offen offset:32")
    A("L_end:\ns_endpgm")
    body, added = fix(o)
    head = HEADER + f"; @launch grid=({NWG},1,1) block=({NW*64},1,1) lds={lds}\n" + \
        f'.amdgcn_target "amdgcn-amd-amdhsa--gfx950"\n.text\n.globl {KN}\n.p2align 8\n.type {KN},@function\n{KN}:\n'
    tail = f"""
.section .rodata,"a"
.p2align 6
.amdhsa_kernel {KN}
  .amdhsa_next_free_vgpr {nv + 256}
  .amdhsa_next_free_sgpr 96
  .amdhsa_accum_offset {nv}
  .amdhsa_group_segment_fixed_size 0
  .amdhsa_kernarg_size 48
  .amdhsa_user_sgpr_count 2
  .amdhsa_user_sgpr_kernarg_segment_ptr 1
  .amdhsa_system_sgpr_workgroup_id_x 1
.end_amdhsa_kernel
"""
    open(path, 'w').write(head + "\n".join(body) + tail)
    print(f"{path}: {len(body)} lines, {added} nop states added", file=sys.stderr)
if __name__ == "__main__":
    kw = {}
    for a in sys.argv[2:]:
        k, v = a.split('=')
        kw[k] = int(v) if (v.lstrip('-').isdigit() and k not in ('wk','wv')) else v.replace('+', ' ')
    gen(sys.argv[1], **kw)
```

```python
import sys, struct, math
from hz import fix
KN = "standalone__gqa_softmax__sampling_kernel"
HEADER = """; Kernarg layout for this problem (48 bytes, ptrs only, base s[0:1]):
"""
def f2u(f): return struct.unpack('<I', struct.pack('<f', f))[0]

def gen(path, W=5, flags='nt', pairmap='adj', stamp=0, touch=0, NT=32, pre=0, padto=0, oflags='', gpad=0, wk='', wv='', w2=0, x2=0, RING=4, cut=0, nocomp=0, force=0, late=0, clrslot=-1, noclr=0, notok=0, nospec=0, P1=6, qflags='', fflags='sc1', w1=0, x1=0, y1=0, pf=0, enc=-1):
    NW = 4; NWG = 256
    o = []; A = o.append
    vm = []; st = {'done': 0}
    def VM(text, tag): A(text); vm.append(tag)
    def WAITN(n):
        A(f"s_waitcnt vmcnt({n})"); st['done'] = max(st['done'], len(vm) - n)
    def REQ(tag):
        idx = len(vm) - 1 - vm[::-1].index(tag)
        if idx >= st['done']: WAITN(len(vm) - idx - 1)
    LDS_ST = 65536; LDS_BN = 65536 + 2048
    LDS_FL = LDS_BN + 4 * 2176
    lds = LDS_FL + 64
    SLOT = 5120; WS_A = 0x500000; WS_FB = 0x800000; TOKEN = 0x13579bdf
    vKld = [1, 2, 3, 4]; vKrd = [5, 6, 7, 8]; vVoff = 9; vQoff = 10
    vMp, vT0, vT1 = 12, 13, 14
    vM = [15, 11]; vA = [16, 18]; vL = [20, 21]; vTmp = 22
    vAl = 24
    vQ = 56; vVT = 56
    vKF = 88; vS = 120; vO = 88
    vP = 152
    vV = 160
    nv = 160 + 16 * RING
    S = lambda b, h, T, r=0: vS + b * 16 + (h * 2 + T) * 4 + r
    P = lambda h, u=0: vP + h * 4 + u
    aP = lambda t, h, u=0: t * 8 + h * 4 + u
    VT = lambda j, u=0: vVT + j * 4 + u
    O = lambda h, j, r=0: vO + (h * 8 + j) * 4 + r
    Vb = lambda n, i, w=0: vV + (n % RING) * 16 + i * 4 + w
    KF = lambda T, s: vKF + (T * 4 + s) * 4
    Q = lambda h, s: vQ + (h * 4 + s) * 4
    vr = lambda r, n=4: f"v[{r}:{r+n-1}]"
    ar = lambda r, n=4: f"a[{r}:{r+n-1}]"
    sK, sV, sQ, sOut, sWs, sDbg = 's[16:19]', 's[20:23]', 's[24:27]', 's[28:31]', 's[32:35]', 's[36:39]'
    def STAMP(i):
        if stamp: A(f"s_memrealtime s[{64+2*i}:{65+2*i}]")
    A(f"s_cmp_ge_u32 s2, {NWG}\ns_cbranch_scc1 L_end")
    A("s_load_dwordx8 s[4:11], s[0:1], 0\ns_load_dwordx4 s[12:15], s[0:1], 32")
    STAMP(0)
    if padto: A("s_memrealtime s[84:85]")
    if stamp:
        A("s_memtime s[80:81]")
        for i in range(1, 8): A(f"s_mov_b64 s[{64+2*i}:{65+2*i}], 0")
    if late:
        A(f"s_bitcmp1_b32 s2, 0\ns_cbranch_scc0 L_go\ns_memrealtime s[84:85]\ns_waitcnt lgkmcnt(0)\nL_late:\ns_memrealtime s[86:87]\ns_waitcnt lgkmcnt(0)\ns_sub_u32 s86, s86, s84\ns_cmp_lt_u32 s86, {late*100}\ns_cbranch_scc1 L_late\nL_go:")
    A("v_lshrrev_b32 v1, 6, v0\nv_and_b32 v0, 63, v0")
    A("v_and_b32 v11, 15, v0           ; p / m / n")
    A("v_readfirstlane_b32 s40, v1")
    A("v_lshrrev_b32 v12, 4, v0        ; q / g")
    A("v_lshlrev_b32 v13, 2, v12       ; 4q")
    A("v_xor_b32 v13, v13, v11         ; p ^ 4q")
    A("v_lshlrev_b32 v14, 8, v12       ; q*256")
    for i in range(4):
        A(f"v_xor_b32 v15, {i}, v13\nv_lshl_add_u32 v{vKld[i]}, v15, 4, v14")
    if pairmap == 'adj':
        A("s_lshr_b32 s41, s2, 1\ns_and_b32 s42, s2, 1")
    else:
        A("s_and_b32 s41, s2, 127\ns_lshr_b32 s42, s2, 7")
    A("s_lshl_b32 s43, s42, 2\ns_add_u32 s43, s43, s40      ; widx")
    A("s_lshl_b32 s44, s43, 12      ; K soffset\ns_mov_b32 s45, s44")
    A("s_lshl_b32 s46, s41, 21")
    A("s_lshl_b32 s47, s40, 14")
    A("s_mov_b32 s18, 0x200000\ns_mov_b32 s19, 0x20000")
    A("s_mov_b32 m0, s47")
    A("s_waitcnt lgkmcnt(0)")
    A("s_add_u32 s16, s6, s46\ns_addc_u32 s17, s7, 0")
    if pre:
        A("s_add_u32 s20, s8, s46\ns_addc_u32 s21, s9, 0\ns_mov_b32 s22, 0x200000\ns_mov_b32 s23, 0x20000")
        A(f"v_lshlrev_b32 v{vVoff}, 4, v0")
        for nm, srd in (('v', sV), ('k', sK)):
            A(f"s_mov_b32 s60, s44\ns_mov_b32 s61, 64\nL_pre{nm}:")
            for i in range(4):
                A(f"s_waitcnt vmcnt({W-1})\nbuffer_load_dwordx4 v[{160+4*i}:{163+4*i}], v{vVoff}, {srd}, s60 offen offset:{i*1024} {flags}")
            A(f"s_add_u32 s60, s60, 0x8000\ns_sub_u32 s61, s61, 1\ns_cmp_eq_u32 s61, 0\ns_cbranch_scc0 L_pre{nm}")
        A("s_waitcnt vmcnt(0)")
    NS = NT * 8
    wk = str(wk) or str(W); wv = str(wv) or str(W)
    win = [int(wk[k % len(wk)], 16) for k in range(NS)] + [int(wv[k % len(wv)], 16) for k in range(NS)]
    if w2:
        for k in range(2 * NS - x2, 2 * NS): win[k] = w2
    if w1:
        for k in range(NS - x1, NS + y1): win[k] = w1
    win += [win[-1]] * 64
    def ready(idx):
        k = idx + 1
        while k - win[k] < idx: k += 1
        return k
    RK = [ready(4 * n + 3) for n in range(2 * NT)]
    for n in range(1, 2 * NT): RK[n] = max(RK[n], RK[n - 1] + 4)
    RV = [ready(NS + 4 * n + 3) for n in range(2 * NT)]
    RV[0] = max(RV[0], RK[-1] + 4)
    for n in range(1, 2 * NT): RV[n] = max(RV[n], min(RV[n - 1] + 4, NS + 4 * n + 4 * RING - 4 - 1))
    work = {}
    def at(slot, fn): work.setdefault(slot, []).append(fn)
    def setup2():
        A("s_add_u32 s20, s8, s46\ns_addc_u32 s21, s9, 0\ns_mov_b32 s22, 0x200000\ns_mov_b32 s23, 0x20000")
        A("s_mov_b32 s24, s4\ns_mov_b32 s25, s5\ns_mov_b32 s26, 0x100000\ns_mov_b32 s27, 0x20000")
        A("s_lshl_b32 s51, s41, 13\ns_add_u32 s52, s51, 4096")
        A(f"v_lshlrev_b32 v15, 4, v12\nv_lshl_add_u32 v{vQoff}, v11, 8, v15     ; n*256 + g*16")
        for h in range(2):
            for s in range(4):
                VM(f"buffer_load_dwordx4 {vr(Q(h,s))}, v{vQoff}, {sQ}, {'s51' if h==0 else 's52'} offen offset:{s*64} {qflags}", 'q')
        A(f"v_lshlrev_b32 v{vVoff}, 4, v0")
        A("s_mov_b32 s28, s10\ns_mov_b32 s29, s11\ns_mov_b32 s30, 0x100000\ns_mov_b32 s31, 0x20000")
        A("s_mov_b32 s32, s14\ns_mov_b32 s33, s15\ns_mov_b32 s34, 0x1000000\ns_mov_b32 s35, 0x20000")
        A("s_mov_b32 s36, s12\ns_mov_b32 s37, s13\ns_mov_b32 s38, 256\ns_mov_b32 s39, 0x20000")
        px = 1 if pairmap == 'adj' else 128
        A("s_lshl_b32 s55, s2, 2\ns_add_u32 s55, s55, s40")
        A(f"s_xor_b32 s56, s55, {px*4}")
        A(f"s_mul_i32 s63, s55, {SLOT}")
        A(f"s_mul_i32 s57, s56, {SLOT}")
        A(f"s_add_u32 s58, s57, 4096\ns_add_u32 s89, s63, 4096")
        A("s_and_b32 s59, s41, 1\ns_lshl_b32 s59, s59, 4\ns_lshl_b32 s60, 1, s59\ns_lshr_b32 s61, s41, 1\ns_lshl_b32 s61, s61, 2")
        A(f"v_mov_b32 v{vTmp}, 0\nv_lshlrev_b32 v{vTmp+1}, 3, v0")
        A(f"s_xor_b32 s92, s2, {px}\ns_lshl_b32 s92, s92, 7\ns_add_u32 s92, s92, {WS_A}")
        A(f"s_lshl_b32 s93, s2, 7\ns_add_u32 s93, s93, {WS_A}")
        VM(f"buffer_load_dword v{vV}, v{vTmp}, {sWs}, s92 offen {fflags}", 'f0')
        VM(f"buffer_load_dword v{vV+1}, v{vTmp}, {sWs}, s93 offen {fflags}", 'f0')
        if touch:
            VM(f"buffer_load_dword v{vP+4}, v{vTmp}, {sV}, s45 offen {flags}", 'x')
            VM(f"buffer_load_dword v{vP+4}, v{vTmp}, {sOut}, s51 offen nt", 'x')
        if pf:
            A("s_getpc_b64 s[96:97]\nL_pc:")
            A(f"s_lshr_b32 s46, s2, 3\ns_lshl_b32 s46, s46, 2\ns_add_u32 s46, s46, s40\ns_lshl_b32 s46, s46, 9")
            A(f"v_lshl_add_u32 v{vV+4}, v0, 3, s46")
            A(f"v_min_u32 v{vV+4}, L_end - L_pc - 4, v{vV+4}")
            VM(f"global_load_dword v{vV+5}, v{vV+4}, s[96:97]", 'x')
        A("v_and_b32 v13, 3, v11\nv_lshlrev_b32 v13, 2, v13\nv_lshrrev_b32 v14, 2, v11\nv_add_u32 v13, v13, v14")
        A("v_lshlrev_b32 v13, 8, v13\nv_add_u32 v13, s47, v13")
        A("v_xor_b32 v14, v12, v11      ; g ^ m")
        for s in range(4):
            A(f"v_xor_b32 v15, {4*s}, v14\nv_lshl_add_u32 v{vKrd[s]}, v15, 4, v13")
        c = math.log2(math.e) / math.sqrt(128.0)
        A(f"s_mov_b32 s48, 0x{f2u(c):08x}     ; log2(e)/sqrt(128)")
        A("s_mov_b32 s49, 0x05040100\ns_mov_b32 s50, 0x07060302")
        A(f"v_mov_b32 v{vMp}, 0xff800000")
        A(f"v_mov_b32 v{vL[0]}, 0\nv_mov_b32 v{vL[1]}, 0")
    at(win[0] - 1, setup2)
    vPoll = vQoff
    def flag0():
        REQ('f0')
        A(f"v_readfirstlane_b32 s94, v{vV}\nv_readfirstlane_b32 s95, v{vV+1}\ns_nop 1\ns_add_u32 s95, s95, 1")
    at(19, flag0)
    def poll(track):
        t = f"buffer_load_dword v{vPoll}, v{vTmp}, {sWs}, s92 offen sc1"
        if track: VM(t, 'poll')
        else: A(t)
    def pollres(dst):
        A(f"v_readfirstlane_b32 {dst}, v{vPoll}")
        A(f"s_xor_b32 {dst}, {dst}, s94")
    def cntres(dst):
        A(f"v_readfirstlane_b32 {dst}, v{vPoll}")
        A(f"s_lshr_b32 {dst}, {dst}, s59\ns_and_b32 {dst}, {dst}, 0xffff")
    if cut != 1: at(2 * NS - P1, lambda: poll(True))
    def kread(t, T):
        def f():
            n = 2 * t + T
            REQ(('ld', 4 * n + 3))
            for s in range(4):
                A(f"ds_read_b128 {vr(KF(T,s))}, v{vKrd[s]} offset:{(n%4)*4096}")
        return f
    def kmma(t, T, extra=None):
        def f():
            REQ('q')
            A("s_waitcnt lgkmcnt(0)")
            b = t & 1; k = 0
            for s in range(4):
                for h in range(2):
                    cin = '0' if s == 0 else vr(S(b, h, T))
                    A(f"v_mfma_f32_16x16x32_bf16 {vr(S(b,h,T))}, {vr(KF(T,s))}, {vr(Q(h,s))}, {cin}")
                    if extra and k < len(extra) and (s * 2 + h) % 2 == 1: A(extra[k]); k += 1
        return f
    def smax(t):
        def f():
            b = t & 1; tt = [vT0, vT1]
            for h in range(2): A(f"v_max3_f32 v{tt[h]}, v{S(b,h,0,0)}, v{S(b,h,0,1)}, v{S(b,h,0,2)}")
            for h in range(2): A(f"v_max3_f32 v{tt[h]}, v{tt[h]}, v{S(b,h,0,3)}, v{S(b,h,1,0)}")
            for h in range(2): A(f"v_max3_f32 v{tt[h]}, v{tt[h]}, v{S(b,h,1,1)}, v{S(b,h,1,2)}")
            for h in range(2): A(f"v_max_f32 v{tt[h]}, v{tt[h]}, v{S(b,h,1,3)}")
            A(f"v_permlane32_swap_b32 v{vT0}, v{vT1}")
            A(f"v_max_f32 v{vT0}, v{vT0}, v{vT1}")
            A(f"v_mov_b32 v{vT1}, v{vT0}")
            A(f"v_permlane16_swap_b32 v{vT0}, v{vT1}")
            A(f"v_max_f32 v{vT0}, v{vT0}, v{vT1}")
            A(f"v_mul_f32 v{vT0}, s48, v{vT0}")
            A(f"v_max_f32 v{vM[0]}, v{vMp}, v{vT0}")
            A(f"v_sub_f32 v{vT1}, v{vMp}, v{vM[0]}")
            A(f"v_exp_f32 v{vAl+t}, v{vT1}")
            A(f"v_mov_b32 v{vMp}, v{vM[0]}")
            A(f"v_mov_b32 v{vM[1]}, v{vM[0]}")
            A(f"v_mov_b32 v{vA[0]}, v{vAl+t}")
            A(f"v_mov_b32 v{vA[1]}, v{vAl+t}")
            A(f"v_permlane32_swap_b32 v{vM[0]}, v{vM[1]}")
            A(f"v_permlane32_swap_b32 v{vA[0]}, v{vA[1]}")
        return f
    def sregs(b): return [S(b, h, T, r) for h in range(2) for T in range(2) for r in range(4)]
    def sfma(t):
        def f():
            b = t & 1
            for i, r in enumerate(sregs(b)): A(f"v_fma_f32 v{r}, v{r}, s48, -v{vM[i>>3]}")
            for r in sregs(b)[:4]: A(f"v_exp_f32 v{r}, v{r}")
        return f
    def sexp(t, lo, hi):
        def f():
            for r in sregs(t & 1)[lo:hi]: A(f"v_exp_f32 v{r}, v{r}")
        return f
    def spack(t):
        def f():
            b = t & 1
            for h in range(2):
                for u in range(4):
                    T, x = u >> 1, u & 1
                    A(f"v_cvt_pk_bf16_f32 v{P(h,u)}, v{S(b,h,T,2*x)}, v{S(b,h,T,2*x+1)}")
            for h in range(2):
                for u in range(4): A(f"v_accvgpr_write_b32 a{aP(t,h,u)}, v{P(h,u)}")
        return f
    def lsum(t):
        def f():
            b = t & 1
            for h in range(2): A(f"v_fma_f32 v{vL[h]}, v{vL[h]}, v{vA[h]}, v{S(b,h,0,0)}")
            for idx in range(1, 8):
                for h in range(2): A(f"v_add_f32 v{vL[h]}, v{vL[h]}, v{S(b,h,idx>>2,idx&3)}")
        return f
    for t in range(NT):
        a, b_ = RK[2 * t], RK[2 * t + 1]
        assert b_ >= a + 2
        if t > 0: assert RK[2 * t - 1] + 3 < a + 1 < RK[2 * t - 1] + 6 or (RK[2*t-1] + 3, a + 1)
        assert (a + 1 < 4 * (2 * t + 4) or 2 * t + 4 >= 2 * NT) and (b_ + 1 < 4 * (2 * t + 1 + 4) or 2 * t + 5 >= 2 * NT)
        at(a, kread(t, 0))
        ex = [f"v_exp_f32 v{r}, v{r}" for r in sregs((t - 1) & 1)[12:16]] if t > 0 else None
        at(a + 1, kmma(t, 0, ex))
        at(b_, kread(t, 1))
        at(b_ + 1, kmma(t, 1))
        at(b_ + 2, smax(t))
        at(b_ + 3, sfma(t))
        at(b_ + 4, sexp(t, 4, 12))
        nxt = RK[2 * t + 2] + 1 if t < NT - 1 else b_ + 5
        assert nxt > b_ + 3
        if t == NT - 1: at(b_ + 5, sexp(t, 12, 16))
        at(max(nxt, b_ + 4) + 1, spack(t))
        at(max(nxt, b_ + 4) + 2, lsum(t))
        if t < NT - 1: assert max(nxt, b_ + 4) + 2 <= RK[2 * t + 3] + 1
    kdone = RK[2 * NT - 1] + 7
    def perm(t, j, u):
        T, x, w = u >> 1, u & 1, j >> 1
        n = 2 * t + T
        REQ(('ld', NS + 4 * n + 2 * x + 1))
        A(f"v_perm_b32 v{VT(j,u)}, v{Vb(n,2*x+1,w)}, v{Vb(n,2*x,w)}, {'s49' if j%2==0 else 's50'}")
    def v1(t, i):
        def f():
            if t > 0:
                if i == 0:
                    A(f"v_mov_b32 v{vA[0]}, v{vAl+t}\nv_mov_b32 v{vA[1]}, v{vAl+t}")
                    A(f"v_permlane32_swap_b32 v{vA[0]}, v{vA[1]}")
                for j in (2 * i, 2 * i + 1):
                    for h in range(2):
                        for r in (0, 2):
                            A(f"v_pk_mul_f32 {vr(O(h,j,r),2)}, {vr(O(h,j,r),2)}, {vr(vA[h],2)} op_sel_hi:[1,0]")
            for j in (2 * i, 2 * i + 1):
                for u in (0, 1): perm(t, j, u)
        return f
    def pv(t, j):
        for h in range(2):
            cin = '0' if t == 0 else vr(O(h, j))
            A(f"v_mfma_f32_16x16x32_bf16 {vr(O(h,j))}, {vr(VT(j))}, {ar(aP(t,h))}, {cin}")
    def v2(t, i):
        def f():
            for j in (2 * i, 2 * i + 1):
                for u in (2, 3): perm(t, j, u)
            for j in (2 * i, 2 * i + 1): pv(t, j)
        return f
    vY = 24
    def mbox_load(so_d, so_s, track=False):
        E = (lambda x: VM(x, 'y')) if track else A
        E(f"buffer_load_dwordx2 v[{vY+16}:{vY+17}], v{vTmp+1}, {sWs}, {so_s} offen sc1")
        for i in range(4): E(f"buffer_load_dwordx4 {vr(vY+4*i)}, v{vVoff}, {sWs}, {so_d} offen offset:{i*1024} sc1")
    def owrite(j):
        for h in range(2): A(f"ds_write_b128 v{1 if j < 4 else 2}, {vr(O(h,j))} offset:{(h*8+j)*1024}")
    def v2last(t):
        def f():
            for j in range(8): perm(t, j, 2)
            perm(t, 0, 3); perm(t, 1, 3)
            if cut != 1:
                REQ('poll')
                pollres('s90')
                if force in (1, 2, 3): A("s_mov_b32 s90, 0\ns_cmp_lg_u32 s90, 0")
                if force == 4: A("s_bitcmp1_b32 s40, 0\ns_cselect_b32 s90, 0, s90\ns_cmp_lg_u32 s90, 0")
                A("s_cbranch_scc0 L_nos1")
                mbox_load('s57', 's58')
                A(f"L_nos1:\nv_mov_b32 v{vPoll}, s90\nds_write_b32 v7, v{vPoll}")
            for j in range(8):
                pv(t, j)
                if j + 2 < 8: perm(t, j + 2, 3)
                if j >= 3 and cut != 1: owrite(j - 3)
            if cut != 1:
                for j in range(5, 8): owrite(j)
        return f
    def stats():
        A(f"v_permlane32_swap_b32 v{vL[0]}, v{vL[1]}")
        A(f"v_add_f32 v{vT0}, v{vL[0]}, v{vL[1]}")
        A(f"v_mov_b32 v{vT1}, v{vT0}")
        A(f"v_permlane16_swap_b32 v{vT0}, v{vT1}")
        A(f"v_add_f32 v{vT0}, v{vT0}, v{vT1}")
        A(f"s_lshl_b32 s46, s40, 9\ns_add_u32 s46, s46, {LDS_ST}")
        A(f"v_lshl_add_u32 v{vT1}, v0, 3, s46")
        A(f"ds_write_b64 v{vT1}, v[{vMp}:{vMp+1}]")
        A(f"v_add_u32 v1, s47, v{vVoff}")
        A(f"v_xor_b32 v2, 0x80, v1")
        A("s_lshr_b32 s53, s40, 1       ; h\ns_and_b32 s54, s40, 1")
        A("v_and_b32 v6, 7, v0          ; q'\nv_bfe_u32 v7, v0, 3, 1      ; jh\nv_lshrrev_b32 v8, 4, v0     ; g")
        A("s_lshl_b32 s46, s54, 3\nv_add_u32 v5, s46, v6       ; q")
        A(f"s_lshl_b32 s46, s53, 8\ns_add_u32 s46, s46, {LDS_ST}")
        A(f"v_lshl_add_u32 v3, v5, 3, s46")
        A("v_lshlrev_b32 v4, 3, v7\nv_xor_b32 v4, v4, v5\nv_lshlrev_b32 v4, 4, v4      ; (q ^ 8jh)*16")
        A("v_lshl_add_u32 v4, v8, 8, v4\nv_lshl_add_u32 v4, v7, 12, v4")
        A("s_lshl_b32 s46, s53, 13\nv_add_u32 v4, s46, v4")
        A(f"s_mul_i32 s46, s40, 2176\ns_add_u32 s46, s46, {LDS_BN}")
        A("v_mul_u32_u24 v5, 272, v6\nv_lshl_add_u32 v5, v8, 6, v5\nv_lshl_add_u32 v5, v7, 3, v5\nv_add_u32 v5, s46, v5")
        A("v_mul_u32_u24 v6, 272, v8\nv_and_b32 v7, 15, v0\nv_lshl_add_u32 v6, v7, 4, v6\nv_add_u32 v6, s46, v6")
        A(f"s_lshl_b32 s46, s40, 2\ns_add_u32 s46, s46, {LDS_FL}\nv_mov_b32 v7, s46\nv_mov_b32 v8, {LDS_FL}")
        A("s_lshl_b32 s62, s40, 11\ns_add_u32 s62, s62, s51")
    at(RV[3] + 1, stats)
    assert RV[0] > RK[2 * NT - 1] + 1
    prev = 0
    for t in range(NT):
        a = max(RV[2 * t], prev + 1)
        for i in range(4): at(a + i, v1(t, i))
        b_ = max(RV[2 * t + 1], a + 4)
        if t == 0: assert b_ > kdone, (b_, kdone)
        if t == 1: assert a > kdone
        assert a + 3 < NS + 4 * (2 * t + RING) and b_ + 3 < NS + 4 * (2 * t + 1 + RING), (t, a, b_)
        if t < NT - 1:
            for i in range(4): at(b_ + i, v2(t, i))
        else: at(b_, v2last(t))
        prev = b_ + 3
    last = max(work)
    for k in range(last + 1):
        if k < 2 * NS:
            n, i = (k % NS) // 4, k % 4
            if k < NS:
                if i == 0 and n > 0:
                    A(f"s_add_u32 s44, s44, 0x8000\ns_add_u32 m0, s47, {(n%4)*4096}")
            elif i == 0 and n > 0: A("s_add_u32 s45, s45, 0x8000")
            if k >= win[k]: REQ(('ld', k - win[k]))
            if k < NS: VM(f"buffer_load_dwordx4 v{vKld[i]}, {sK}, s44 offen offset:{i*1024} {flags} lds", ('ld', k))
            else: VM(f"buffer_load_dwordx4 {vr(Vb(n,i))}, v{vVoff}, {sV}, s45 offen offset:{i*1024} {flags}", ('ld', k))
        if stamp and k == NS: STAMP(1)
        if enc >= 0 and k == enc: A("s_memrealtime s[98:99]")
        for f in work.get(k, []):
            if nocomp == 1 and f not in (setup2, stats): continue
            if nocomp == 2 and f not in (setup2, stats) and k >= RV[0] + 8: continue
            if nocomp == 3 and f not in (setup2, stats) and k < RV[0]: continue
            f()
    if nocomp: A("s_waitcnt vmcnt(0)")
    STAMP(2)
    if enc == 9999: A("s_memrealtime s[98:99]")
    if stamp: A("s_memtime s[82:83]")
    if cut == 1: A("s_branch L_fin")
    A("s_waitcnt lgkmcnt(0)\ns_barrier")
    vSt = 42; vX = 160; vMx = 50; vLs = 51; vF = 52; vAcc = 60
    A("ds_read_b128 v[76:79], v8")
    for w in range(4): A(f"ds_read_b64 v[{vSt+2*w}:{vSt+2*w+1}], v3 offset:{w*512}")
    for w in range(4):
        for i in range(4): A(f"ds_read_b128 {vr(vX+(w*4+i)*4)}, v4 offset:{w*16384+i*1024}")
    A("s_waitcnt lgkmcnt(15)")
    A("v_or3_b32 v76, v76, v77, v78\nv_or_b32 v76, v76, v79")
    A(f"v_max3_f32 v{vMx}, v{vSt}, v{vSt+2}, v{vSt+4}")
    A("v_readfirstlane_b32 s91, v76")
    A(f"v_max_f32 v{vMx}, v{vMx}, v{vSt+6}")
    for w in range(4): A(f"v_sub_f32 v{vF+2*w}, v{vSt+2*w}, v{vMx}")
    for w in range(4): A(f"v_exp_f32 v{vF+2*w}, v{vF+2*w}")
    A(f"v_mul_f32 v{vLs}, v{vF}, v{vSt+1}")
    for w in range(1, 4): A(f"v_fmac_f32 v{vLs}, v{vF+2*w}, v{vSt+2*w+1}")
    A("s_waitcnt lgkmcnt(12)")
    for i in range(0, 16, 2): A(f"v_pk_mul_f32 {vr(vAcc+i,2)}, {vr(vX+i,2)}, {vr(vF,2)} op_sel_hi:[1,0]")
    for w in range(1, 4):
        A(f"s_waitcnt lgkmcnt({12-4*w})")
        for i in range(0, 16, 2): A(f"v_pk_fma_f32 {vr(vAcc+i,2)}, {vr(vX+w*16+i,2)}, {vr(vF+2*w,2)}, {vr(vAcc+i,2)} op_sel_hi:[1,0,1]")
    STAMP(3)
    if cut == 2: A("s_branch L_comb")
    if cut == 3: A("s_branch L_fin")
    A("s_cmp_lg_u32 s91, 0\ns_cbranch_scc1 L_have")
    for i in range(4):
        A(f"buffer_store_dwordx4 {vr(vAcc+4*i)}, v{vVoff}, {sWs}, s63 offen offset:{i*1024} sc1")
    A(f"buffer_store_dwordx2 v[{vMx}:{vMx+1}], v{vTmp+1}, {sWs}, s89 offen sc1")
    poll(False)
    A("s_waitcnt vmcnt(0)")
    STAMP(4)
    pollres('s90')
    if force == 2: A("s_mov_b32 s90, 0\ns_cmp_lg_u32 s90, 0")
    if force == 3: A("s_bitcmp1_b32 s40, 1\ns_cselect_b32 s90, 0, s90\ns_cmp_lg_u32 s90, 0")
    A("s_cbranch_scc0 L_nos2")
    mbox_load('s57', 's58')
    A(f"L_nos2:\nv_mov_b32 v{vPoll}, s90\nds_write_b32 v7, v{vPoll} offset:16")
    A("s_waitcnt lgkmcnt(0)\ns_barrier")
    A("ds_read_b128 v[76:79], v8 offset:16\ns_waitcnt lgkmcnt(0)")
    A("v_or3_b32 v76, v76, v77, v78\nv_or_b32 v76, v76, v79\nv_readfirstlane_b32 s91, v76")
    A("s_cmp_lg_u32 s91, 0\ns_cbranch_scc1 L_have")
    A("s_cmp_lg_u32 s40, 0\ns_cbranch_scc1 L_noatomic")
    A(f"v_mov_b32 v{vPoll}, s60\nv_mov_b32 v76, s95")
    A("s_mov_b64 exec, 1")
    A(f"buffer_store_dword v76, v{vTmp}, {sWs}, s93 offen sc1")
    A(f"buffer_atomic_add v{vPoll}, v{vTmp}, {sDbg}, s61 offen sc0")
    A("s_waitcnt vmcnt(0)")
    A(f"ds_write_b32 v8, v{vPoll} offset:32")
    A("s_waitcnt lgkmcnt(0)")
    A("s_mov_b64 exec, -1")
    A("L_noatomic:\ns_barrier")
    A(f"ds_read_b32 v{vPoll}, v8 offset:32\ns_waitcnt lgkmcnt(0)")
    STAMP(5)
    cntres('s91')
    A("s_cbranch_scc0 L_fin")
    A("L_have:")
    A("s_cmp_lg_u32 s90, 0\ns_cbranch_scc1 L_wait")
    mbox_load('s57', 's58')
    A("L_wait:\ns_waitcnt vmcnt(0)")
    A("L_comb:\ns_nop 1")
    A(f"v_max_f32 v12, v{vMx}, v{vY+16}")
    A(f"v_sub_f32 v14, v{vMx}, v12\nv_sub_f32 v16, v{vY+16}, v12")
    A("v_exp_f32 v14, v14\nv_exp_f32 v16, v16")
    A(f"v_mul_f32 v12, v14, v{vLs}\nv_mul_f32 v13, v16, v{vY+17}\nv_add_f32 v12, v12, v13")
    A("v_rcp_f32 v12, v12")
    A("v_mul_f32 v14, v14, v12\nv_mul_f32 v16, v16, v12")
    for i in range(0, 16, 2): A(f"v_pk_mul_f32 {vr(vAcc+i,2)}, {vr(vAcc+i,2)}, v[14:15] op_sel_hi:[1,0]")
    for i in range(0, 16, 2): A(f"v_pk_mul_f32 {vr(vY+i,2)}, {vr(vY+i,2)}, v[16:17] op_sel_hi:[1,0]")
    for i in range(0, 16, 2): A(f"v_pk_add_f32 {vr(vAcc+i,2)}, {vr(vAcc+i,2)}, {vr(vY+i,2)}")
    for r in range(4):
        A(f"v_cvt_pk_bf16_f32 v{80+2*r}, v{vAcc+0*4+r}, v{vAcc+1*4+r}")
        A(f"v_cvt_pk_bf16_f32 v{81+2*r}, v{vAcc+2*4+r}, v{vAcc+3*4+r}")
        A(f"ds_write_b64 v5, v[{80+2*r}:{81+2*r}] offset:{r*16}")
    A("s_waitcnt lgkmcnt(0)")
    A("ds_read_b128 v[88:91], v6\nds_read_b128 v[92:95], v6 offset:1088")
    A("s_waitcnt lgkmcnt(1)")
    A(f"buffer_store_dwordx4 v[88:91], v{vVoff}, {sOut}, s62 offen {oflags}")
    A("s_waitcnt lgkmcnt(0)")
    A(f"buffer_store_dwordx4 v[92:95], v{vVoff}, {sOut}, s62 offen offset:1024 {oflags}")
    if stamp: A("s_waitcnt vmcnt(0)")
    STAMP(6)
    A("L_fin:")
    if gpad:
        A("s_waitcnt vmcnt(0) lgkmcnt(0)\ns_not_b32 s88, s84\nv_mov_b32 v100, s88\nv_mov_b32 v102, s84\nv_mov_b32 v110, 0\ns_mov_b64 exec, 1")
        A("buffer_atomic_umax v100, v110, s[36:39], 0 offen\nbuffer_atomic_umax v102, v110, s[36:39], 0 offen offset:4\ns_waitcnt vmcnt(0)")
        A(f"L_pad0:\ns_memrealtime s[86:87]\ns_waitcnt lgkmcnt(0)\ns_sub_u32 s86, s86, s84\ns_cmp_lt_u32 s86, {(padto-25)*100}\ns_cbranch_scc1 L_pad0")
        A("buffer_load_dword v101, v110, s[36:39], 0 offen sc1\ns_waitcnt vmcnt(0)\nv_readfirstlane_b32 s84, v101\ns_nop 3\ns_not_b32 s84, s84")
    if enc >= 0:
        A("s_waitcnt lgkmcnt(0)\ns_sub_u32 s98, s98, s84\ns_add_u32 s84, s84, s98")
    if padto:
        A(f"s_waitcnt vmcnt(0)\nL_pad:\ns_memrealtime s[86:87]\ns_waitcnt lgkmcnt(0)\ns_sub_u32 s86, s86, s84\ns_cmp_lt_u32 s86, {padto*100}\ns_cbranch_scc1 L_pad")
    if stamp:
        A("s_waitcnt lgkmcnt(0)")
        A("s_lshl_b32 s46, s2, 2\ns_add_u32 s46, s46, s40\ns_lshl_b32 s46, s46, 6\ns_add_u32 s46, s46, 0x600000")
        for i in range(7): A(f"v_mov_b32 v{100+i}, s{64+2*i}")
        A("s_getreg_b32 s47, hwreg(HW_REG_XCC_ID)\nv_mov_b32 v107, s47")
        A("s_sub_u32 s82, s82, s80\nv_mov_b32 v108, s82\nv_mov_b32 v109, 0x7fffffff")
        A("v_mov_b32 v110, 0\ns_mov_b64 exec, 1")
        A("buffer_store_dwordx4 v[100:103], v110, s[32:35], s46 offen")
        A("buffer_store_dwordx4 v[104:107], v110, s[32:35], s46 offen offset:16")
        A("buffer_store_dwordx2 v[108:109], v110, s[32:35], s46 offen offset:32")
    A("L_end:\ns_endpgm")
    body, added = fix(o)
    head = HEADER + f"; @launch grid=({NWG},1,1) block=({NW*64},1,1) lds={lds}\n" + \
        f'.amdgcn_target "amdgcn-amd-amdhsa--gfx950"\n.text\n.globl {KN}\n.p2align 8\n.type {KN},@function\n{KN}:\n'
    tail = f"""
.section .rodata,"a"
.p2align 6
.amdhsa_kernel {KN}
  .amdhsa_next_free_vgpr {nv + 256}
  .amdhsa_next_free_sgpr 100
  .amdhsa_accum_offset {nv}
  .amdhsa_group_segment_fixed_size 0
  .amdhsa_kernarg_size 48
  .amdhsa_user_sgpr_count 2
  .amdhsa_user_sgpr_kernarg_segment_ptr 1
  .amdhsa_system_sgpr_workgroup_id_x 1
.end_amdhsa_kernel
"""
    open(path, 'w').write(head + "\n".join(body) + tail)
    print(f"{path}: {len(body)} lines, {added} nop states added", file=sys.stderr)
if __name__ == "__main__":
    kw = {}
    for a in sys.argv[2:]:
        k, v = a.split('=')
        kw[k] = int(v) if (v.lstrip('-').isdigit() and k not in ('wk','wv')) else v.replace('+', ' ')
    gen(sys.argv[1], **kw)
```

```python
import sys, struct, math
from hz import fix
KN = "standalone__gqa_softmax__sampling_kernel"
HEADER = """; Kernarg layout for this problem (48 bytes, ptrs only, base s[0:1]):
"""
def f2u(f): return struct.unpack('<I', struct.pack('<f', f))[0]

def gen(path, W=5, flags='nt', pairmap='adj', stamp=0, touch=0, NT=32, pre=0, padto=0, oflags='', gpad=0, wk='', wv='', w2=0, x2=0, RING=4, cut=0, nocomp=0, force=0, late=0, clrslot=-1, noclr=0, notok=0, nospec=0, P1=6, qflags='', fflags='sc1', w1=0, x1=0, y1=0, pf=0, enc=-1):
    NW = 4; NWG = 256
    o = []; A = o.append
    vm = []; st = {'done': 0}
    def VM(text, tag): A(text); vm.append(tag)
    def WAITN(n):
        A(f"s_waitcnt vmcnt({n})"); st['done'] = max(st['done'], len(vm) - n)
    def REQ(tag):
        idx = len(vm) - 1 - vm[::-1].index(tag)
        if idx >= st['done']: WAITN(len(vm) - idx - 1)
    LDS_ST = 65536; LDS_BN = 65536 + 2048
    LDS_FL = LDS_BN + 4 * 2176
    lds = LDS_FL + 64
    SLOT = 5120; WS_A = 0x500000; WS_FB = 0x800000; TOKEN = 0x13579bdf
    vKld = [1, 2, 3, 4]; vKrd = [5, 6, 7, 8]; vVoff = 9; vQoff = 10
    vMp, vT0, vT1 = 12, 13, 14
    vM = [15, 11]; vA = [16, 18]; vL = [20, 21]; vTmp = 22
    vAl = 24
    vQ = 56; vVT = 56
    vKF = 88; vS = 120; vO = 88
    vP = 152
    vV = 160
    nv = 160 + 16 * RING
    S = lambda b, h, T, r=0: vS + b * 16 + (h * 2 + T) * 4 + r
    P = lambda h, u=0: vP + h * 4 + u
    aP = lambda t, h, u=0: t * 8 + h * 4 + u
    VT = lambda j, u=0: vVT + j * 4 + u
    O = lambda h, j, r=0: vO + (h * 8 + j) * 4 + r
    Vb = lambda n, i, w=0: vV + (n % RING) * 16 + i * 4 + w
    KF = lambda T, s: vKF + (T * 4 + s) * 4
    Q = lambda h, s: vQ + (h * 4 + s) * 4
    vr = lambda r, n=4: f"v[{r}:{r+n-1}]"
    ar = lambda r, n=4: f"a[{r}:{r+n-1}]"
    sK, sV, sQ, sOut, sWs, sDbg = 's[16:19]', 's[20:23]', 's[24:27]', 's[28:31]', 's[32:35]', 's[36:39]'
    def STAMP(i):
        if stamp: A(f"s_memrealtime s[{64+2*i}:{65+2*i}]")
    A(f"s_cmp_ge_u32 s2, {NWG}\ns_cbranch_scc1 L_end")
    A("s_load_dwordx8 s[4:11], s[0:1], 0\ns_load_dwordx4 s[12:15], s[0:1], 32")
    STAMP(0)
    if padto: A("s_memrealtime s[84:85]")
    if stamp:
        A("s_memtime s[80:81]")
        for i in range(1, 8): A(f"s_mov_b64 s[{64+2*i}:{65+2*i}], 0")
    if late:
        A(f"s_bitcmp1_b32 s2, 0\ns_cbranch_scc0 L_go\ns_memrealtime s[84:85]\ns_waitcnt lgkmcnt(0)\nL_late:\ns_memrealtime s[86:87]\ns_waitcnt lgkmcnt(0)\ns_sub_u32 s86, s86, s84\ns_cmp_lt_u32 s86, {late*100}\ns_cbranch_scc1 L_late\nL_go:")
    A("v_lshrrev_b32 v1, 6, v0\nv_and_b32 v0, 63, v0")
    A("v_and_b32 v11, 15, v0           ; p / m / n")
    A("v_readfirstlane_b32 s40, v1")
    A("v_lshrrev_b32 v12, 4, v0        ; q / g")
    A("v_lshlrev_b32 v13, 2, v12       ; 4q")
    A("v_xor_b32 v13, v13, v11         ; p ^ 4q")
    A("v_lshlrev_b32 v14, 8, v12       ; q*256")
    for i in range(4):
        A(f"v_xor_b32 v15, {i}, v13\nv_lshl_add_u32 v{vKld[i]}, v15, 4, v14")
    if pairmap == 'adj':
        A("s_lshr_b32 s41, s2, 1\ns_and_b32 s42, s2, 1")
    else:
        A("s_and_b32 s41, s2, 127\ns_lshr_b32 s42, s2, 7")
    A("s_lshl_b32 s43, s42, 2\ns_add_u32 s43, s43, s40      ; widx")
    A("s_lshl_b32 s44, s43, 12      ; K soffset\ns_mov_b32 s45, s44")
    A("s_lshl_b32 s46, s41, 21")
    A("s_lshl_b32 s47, s40, 14")
    A("s_mov_b32 s18, 0x200000\ns_mov_b32 s19, 0x20000")
    A("s_mov_b32 m0, s47")
    if enc == 9000: A("s_memrealtime s[98:99]")
    A("s_waitcnt lgkmcnt(0)")
    if enc == 9001: A("s_memrealtime s[98:99]")
    A("s_add_u32 s16, s6, s46\ns_addc_u32 s17, s7, 0")
    if pre:
        A("s_add_u32 s20, s8, s46\ns_addc_u32 s21, s9, 0\ns_mov_b32 s22, 0x200000\ns_mov_b32 s23, 0x20000")
        A(f"v_lshlrev_b32 v{vVoff}, 4, v0")
        for nm, srd in (('v', sV), ('k', sK)):
            A(f"s_mov_b32 s60, s44\ns_mov_b32 s61, 64\nL_pre{nm}:")
            for i in range(4):
                A(f"s_waitcnt vmcnt({W-1})\nbuffer_load_dwordx4 v[{160+4*i}:{163+4*i}], v{vVoff}, {srd}, s60 offen offset:{i*1024} {flags}")
            A(f"s_add_u32 s60, s60, 0x8000\ns_sub_u32 s61, s61, 1\ns_cmp_eq_u32 s61, 0\ns_cbranch_scc0 L_pre{nm}")
        A("s_waitcnt vmcnt(0)")
    NS = NT * 8
    wk = str(wk) or str(W); wv = str(wv) or str(W)
    win = [int(wk[k % len(wk)], 16) for k in range(NS)] + [int(wv[k % len(wv)], 16) for k in range(NS)]
    if w2:
        for k in range(2 * NS - x2, 2 * NS): win[k] = w2
    if w1:
        for k in range(NS - x1, NS + y1): win[k] = w1
    win += [win[-1]] * 64
    def ready(idx):
        k = idx + 1
        while k - win[k] < idx: k += 1
        return k
    RK = [ready(4 * n + 3) for n in range(2 * NT)]
    for n in range(1, 2 * NT): RK[n] = max(RK[n], RK[n - 1] + 4)
    RV = [ready(NS + 4 * n + 3) for n in range(2 * NT)]
    RV[0] = max(RV[0], RK[-1] + 4)
    for n in range(1, 2 * NT): RV[n] = max(RV[n], min(RV[n - 1] + 4, NS + 4 * n + 4 * RING - 4 - 1))
    work = {}
    def at(slot, fn): work.setdefault(slot, []).append(fn)
    def setup2():
        A("s_add_u32 s20, s8, s46\ns_addc_u32 s21, s9, 0\ns_mov_b32 s22, 0x200000\ns_mov_b32 s23, 0x20000")
        A("s_mov_b32 s24, s4\ns_mov_b32 s25, s5\ns_mov_b32 s26, 0x100000\ns_mov_b32 s27, 0x20000")
        A("s_lshl_b32 s51, s41, 13\ns_add_u32 s52, s51, 4096")
        A(f"v_lshlrev_b32 v15, 4, v12\nv_lshl_add_u32 v{vQoff}, v11, 8, v15     ; n*256 + g*16")
        for h in range(2):
            for s in range(4):
                VM(f"buffer_load_dwordx4 {vr(Q(h,s))}, v{vQoff}, {sQ}, {'s51' if h==0 else 's52'} offen offset:{s*64} {qflags}", 'q')
        A(f"v_lshlrev_b32 v{vVoff}, 4, v0")
        A("s_mov_b32 s28, s10\ns_mov_b32 s29, s11\ns_mov_b32 s30, 0x100000\ns_mov_b32 s31, 0x20000")
        A("s_mov_b32 s32, s14\ns_mov_b32 s33, s15\ns_mov_b32 s34, 0x1000000\ns_mov_b32 s35, 0x20000")
        A("s_mov_b32 s36, s12\ns_mov_b32 s37, s13\ns_mov_b32 s38, 256\ns_mov_b32 s39, 0x20000")
        px = 1 if pairmap == 'adj' else 128
        A("s_lshl_b32 s55, s2, 2\ns_add_u32 s55, s55, s40")
        A(f"s_xor_b32 s56, s55, {px*4}")
        A(f"s_mul_i32 s63, s55, {SLOT}")
        A(f"s_mul_i32 s57, s56, {SLOT}")
        A(f"s_add_u32 s58, s57, 4096\ns_add_u32 s89, s63, 4096")
        A("s_and_b32 s59, s41, 1\ns_lshl_b32 s59, s59, 4\ns_lshl_b32 s60, 1, s59\ns_lshr_b32 s61, s41, 1\ns_lshl_b32 s61, s61, 2")
        A(f"v_mov_b32 v{vTmp}, 0\nv_lshlrev_b32 v{vTmp+1}, 3, v0")
        A(f"s_xor_b32 s92, s2, {px}\ns_lshl_b32 s92, s92, 7\ns_add_u32 s92, s92, {WS_A}")
        A(f"s_lshl_b32 s93, s2, 7\ns_add_u32 s93, s93, {WS_A}")
        VM(f"buffer_load_dword v{vV}, v{vTmp}, {sWs}, s92 offen {fflags}", 'f0')
        VM(f"buffer_load_dword v{vV+1}, v{vTmp}, {sWs}, s93 offen {fflags}", 'f0')
        if touch:
            VM(f"buffer_load_dword v{vP+4}, v{vTmp}, {sV}, s45 offen {flags}", 'x')
            VM(f"buffer_load_dword v{vP+4}, v{vTmp}, {sOut}, s51 offen nt", 'x')
        if pf:
            A("s_getpc_b64 s[96:97]\nL_pc:")
            A(f"s_lshr_b32 s46, s2, 3\ns_lshl_b32 s46, s46, 2\ns_add_u32 s46, s46, s40\ns_lshl_b32 s46, s46, 9")
            A(f"v_lshl_add_u32 v{vV+4}, v0, 3, s46")
            A(f"v_min_u32 v{vV+4}, L_end - L_pc - 4, v{vV+4}")
            VM(f"global_load_dword v{vV+5}, v{vV+4}, s[96:97]", 'x')
        A("v_and_b32 v13, 3, v11\nv_lshlrev_b32 v13, 2, v13\nv_lshrrev_b32 v14, 2, v11\nv_add_u32 v13, v13, v14")
        A("v_lshlrev_b32 v13, 8, v13\nv_add_u32 v13, s47, v13")
        A("v_xor_b32 v14, v12, v11      ; g ^ m")
        for s in range(4):
            A(f"v_xor_b32 v15, {4*s}, v14\nv_lshl_add_u32 v{vKrd[s]}, v15, 4, v13")
        c = math.log2(math.e) / math.sqrt(128.0)
        A(f"s_mov_b32 s48, 0x{f2u(c):08x}     ; log2(e)/sqrt(128)")
        A("s_mov_b32 s49, 0x05040100\ns_mov_b32 s50, 0x07060302")
        A(f"v_mov_b32 v{vMp}, 0xff800000")
        A(f"v_mov_b32 v{vL[0]}, 0\nv_mov_b32 v{vL[1]}, 0")
        if enc == 9002: A("s_memrealtime s[98:99]")
    at(win[0] - 1, setup2)
    vPoll = vQoff
    def flag0():
        REQ('f0')
        A(f"v_readfirstlane_b32 s94, v{vV}\nv_readfirstlane_b32 s95, v{vV+1}\ns_nop 1\ns_add_u32 s95, s95, 1")
    at(19, flag0)
    def poll(track):
        t = f"buffer_load_dword v{vPoll}, v{vTmp}, {sWs}, s92 offen sc1"
        if track: VM(t, 'poll')
        else: A(t)
    def pollres(dst):
        A(f"v_readfirstlane_b32 {dst}, v{vPoll}")
        A(f"s_xor_b32 {dst}, {dst}, s94")
    def cntres(dst):
        A(f"v_readfirstlane_b32 {dst}, v{vPoll}")
        A(f"s_lshr_b32 {dst}, {dst}, s59\ns_and_b32 {dst}, {dst}, 0xffff")
    if cut != 1: at(2 * NS - P1, lambda: poll(True))
    def kread(t, T):
        def f():
            n = 2 * t + T
            REQ(('ld', 4 * n + 3))
            for s in range(4):
                A(f"ds_read_b128 {vr(KF(T,s))}, v{vKrd[s]} offset:{(n%4)*4096}")
        return f
    def kmma(t, T, extra=None):
        def f():
            REQ('q')
            A("s_waitcnt lgkmcnt(0)")
            b = t & 1; k = 0
            for s in range(4):
                for h in range(2):
                    cin = '0' if s == 0 else vr(S(b, h, T))
                    A(f"v_mfma_f32_16x16x32_bf16 {vr(S(b,h,T))}, {vr(KF(T,s))}, {vr(Q(h,s))}, {cin}")
                    if extra and k < len(extra) and (s * 2 + h) % 2 == 1: A(extra[k]); k += 1
        return f
    def smax(t):
        def f():
            b = t & 1; tt = [vT0, vT1]
            for h in range(2): A(f"v_max3_f32 v{tt[h]}, v{S(b,h,0,0)}, v{S(b,h,0,1)}, v{S(b,h,0,2)}")
            for h in range(2): A(f"v_max3_f32 v{tt[h]}, v{tt[h]}, v{S(b,h,0,3)}, v{S(b,h,1,0)}")
            for h in range(2): A(f"v_max3_f32 v{tt[h]}, v{tt[h]}, v{S(b,h,1,1)}, v{S(b,h,1,2)}")
            for h in range(2): A(f"v_max_f32 v{tt[h]}, v{tt[h]}, v{S(b,h,1,3)}")
            A(f"v_permlane32_swap_b32 v{vT0}, v{vT1}")
            A(f"v_max_f32 v{vT0}, v{vT0}, v{vT1}")
            A(f"v_mov_b32 v{vT1}, v{vT0}")
            A(f"v_permlane16_swap_b32 v{vT0}, v{vT1}")
            A(f"v_max_f32 v{vT0}, v{vT0}, v{vT1}")
            A(f"v_mul_f32 v{vT0}, s48, v{vT0}")
            A(f"v_max_f32 v{vM[0]}, v{vMp}, v{vT0}")
            A(f"v_sub_f32 v{vT1}, v{vMp}, v{vM[0]}")
            A(f"v_exp_f32 v{vAl+t}, v{vT1}")
            A(f"v_mov_b32 v{vMp}, v{vM[0]}")
            A(f"v_mov_b32 v{vM[1]}, v{vM[0]}")
            A(f"v_mov_b32 v{vA[0]}, v{vAl+t}")
            A(f"v_mov_b32 v{vA[1]}, v{vAl+t}")
            A(f"v_permlane32_swap_b32 v{vM[0]}, v{vM[1]}")
            A(f"v_permlane32_swap_b32 v{vA[0]}, v{vA[1]}")
        return f
    def sregs(b): return [S(b, h, T, r) for h in range(2) for T in range(2) for r in range(4)]
    def sfma(t):
        def f():
            b = t & 1
            for i, r in enumerate(sregs(b)): A(f"v_fma_f32 v{r}, v{r}, s48, -v{vM[i>>3]}")
            for r in sregs(b)[:4]: A(f"v_exp_f32 v{r}, v{r}")
        return f
    def sexp(t, lo, hi):
        def f():
            for r in sregs(t & 1)[lo:hi]: A(f"v_exp_f32 v{r}, v{r}")
        return f
    def spack(t):
        def f():
            b = t & 1
            for h in range(2):
                for u in range(4):
                    T, x = u >> 1, u & 1
                    A(f"v_cvt_pk_bf16_f32 v{P(h,u)}, v{S(b,h,T,2*x)}, v{S(b,h,T,2*x+1)}")
            for h in range(2):
                for u in range(4): A(f"v_accvgpr_write_b32 a{aP(t,h,u)}, v{P(h,u)}")
        return f
    def lsum(t):
        def f():
            b = t & 1
            for h in range(2): A(f"v_fma_f32 v{vL[h]}, v{vL[h]}, v{vA[h]}, v{S(b,h,0,0)}")
            for idx in range(1, 8):
                for h in range(2): A(f"v_add_f32 v{vL[h]}, v{vL[h]}, v{S(b,h,idx>>2,idx&3)}")
        return f
    for t in range(NT):
        a, b_ = RK[2 * t], RK[2 * t + 1]
        assert b_ >= a + 2
        if t > 0: assert RK[2 * t - 1] + 3 < a + 1 < RK[2 * t - 1] + 6 or (RK[2*t-1] + 3, a + 1)
        assert (a + 1 < 4 * (2 * t + 4) or 2 * t + 4 >= 2 * NT) and (b_ + 1 < 4 * (2 * t + 1 + 4) or 2 * t + 5 >= 2 * NT)
        at(a, kread(t, 0))
        ex = [f"v_exp_f32 v{r}, v{r}" for r in sregs((t - 1) & 1)[12:16]] if t > 0 else None
        at(a + 1, kmma(t, 0, ex))
        at(b_, kread(t, 1))
        at(b_ + 1, kmma(t, 1))
        at(b_ + 2, smax(t))
        at(b_ + 3, sfma(t))
        at(b_ + 4, sexp(t, 4, 12))
        nxt = RK[2 * t + 2] + 1 if t < NT - 1 else b_ + 5
        assert nxt > b_ + 3
        if t == NT - 1: at(b_ + 5, sexp(t, 12, 16))
        at(max(nxt, b_ + 4) + 1, spack(t))
        at(max(nxt, b_ + 4) + 2, lsum(t))
        if t < NT - 1: assert max(nxt, b_ + 4) + 2 <= RK[2 * t + 3] + 1
    kdone = RK[2 * NT - 1] + 7
    def perm(t, j, u):
        T, x, w = u >> 1, u & 1, j >> 1
        n = 2 * t + T
        REQ(('ld', NS + 4 * n + 2 * x + 1))
        A(f"v_perm_b32 v{VT(j,u)}, v{Vb(n,2*x+1,w)}, v{Vb(n,2*x,w)}, {'s49' if j%2==0 else 's50'}")
    def v1(t, i):
        def f():
            if t > 0:
                if i == 0:
                    A(f"v_mov_b32 v{vA[0]}, v{vAl+t}\nv_mov_b32 v{vA[1]}, v{vAl+t}")
                    A(f"v_permlane32_swap_b32 v{vA[0]}, v{vA[1]}")
                for j in (2 * i, 2 * i + 1):
                    for h in range(2):
                        for r in (0, 2):
                            A(f"v_pk_mul_f32 {vr(O(h,j,r),2)}, {vr(O(h,j,r),2)}, {vr(vA[h],2)} op_sel_hi:[1,0]")
            for j in (2 * i, 2 * i + 1):
                for u in (0, 1): perm(t, j, u)
        return f
    def pv(t, j):
        for h in range(2):
            cin = '0' if t == 0 else vr(O(h, j))
            A(f"v_mfma_f32_16x16x32_bf16 {vr(O(h,j))}, {vr(VT(j))}, {ar(aP(t,h))}, {cin}")
    def v2(t, i):
        def f():
            for j in (2 * i, 2 * i + 1):
                for u in (2, 3): perm(t, j, u)
            for j in (2 * i, 2 * i + 1): pv(t, j)
        return f
    vY = 24
    def mbox_load(so_d, so_s, track=False):
        E = (lambda x: VM(x, 'y')) if track else A
        E(f"buffer_load_dwordx2 v[{vY+16}:{vY+17}], v{vTmp+1}, {sWs}, {so_s} offen sc1")
        for i in range(4): E(f"buffer_load_dwordx4 {vr(vY+4*i)}, v{vVoff}, {sWs}, {so_d} offen offset:{i*1024} sc1")
    def owrite(j):
        for h in range(2): A(f"ds_write_b128 v{1 if j < 4 else 2}, {vr(O(h,j))} offset:{(h*8+j)*1024}")
    def v2last(t):
        def f():
            for j in range(8): perm(t, j, 2)
            perm(t, 0, 3); perm(t, 1, 3)
            if cut != 1:
                REQ('poll')
                pollres('s90')
                if force in (1, 2, 3): A("s_mov_b32 s90, 0\ns_cmp_lg_u32 s90, 0")
                if force == 4: A("s_bitcmp1_b32 s40, 0\ns_cselect_b32 s90, 0, s90\ns_cmp_lg_u32 s90, 0")
                A("s_cbranch_scc0 L_nos1")
                mbox_load('s57', 's58')
                A(f"L_nos1:\nv_mov_b32 v{vPoll}, s90\nds_write_b32 v7, v{vPoll}")
            for j in range(8):
                pv(t, j)
                if j + 2 < 8: perm(t, j + 2, 3)
                if j >= 3 and cut != 1: owrite(j - 3)
            if cut != 1:
                for j in range(5, 8): owrite(j)
        return f
    def stats():
        A(f"v_permlane32_swap_b32 v{vL[0]}, v{vL[1]}")
        A(f"v_add_f32 v{vT0}, v{vL[0]}, v{vL[1]}")
        A(f"v_mov_b32 v{vT1}, v{vT0}")
        A(f"v_permlane16_swap_b32 v{vT0}, v{vT1}")
        A(f"v_add_f32 v{vT0}, v{vT0}, v{vT1}")
        A(f"s_lshl_b32 s46, s40, 9\ns_add_u32 s46, s46, {LDS_ST}")
        A(f"v_lshl_add_u32 v{vT1}, v0, 3, s46")
        A(f"ds_write_b64 v{vT1}, v[{vMp}:{vMp+1}]")
        A(f"v_add_u32 v1, s47, v{vVoff}")
        A(f"v_xor_b32 v2, 0x80, v1")
        A("s_lshr_b32 s53, s40, 1       ; h\ns_and_b32 s54, s40, 1")
        A("v_and_b32 v6, 7, v0          ; q'\nv_bfe_u32 v7, v0, 3, 1      ; jh\nv_lshrrev_b32 v8, 4, v0     ; g")
        A("s_lshl_b32 s46, s54, 3\nv_add_u32 v5, s46, v6       ; q")
        A(f"s_lshl_b32 s46, s53, 8\ns_add_u32 s46, s46, {LDS_ST}")
        A(f"v_lshl_add_u32 v3, v5, 3, s46")
        A("v_lshlrev_b32 v4, 3, v7\nv_xor_b32 v4, v4, v5\nv_lshlrev_b32 v4, 4, v4      ; (q ^ 8jh)*16")
        A("v_lshl_add_u32 v4, v8, 8, v4\nv_lshl_add_u32 v4, v7, 12, v4")
        A("s_lshl_b32 s46, s53, 13\nv_add_u32 v4, s46, v4")
        A(f"s_mul_i32 s46, s40, 2176\ns_add_u32 s46, s46, {LDS_BN}")
        A("v_mul_u32_u24 v5, 272, v6\nv_lshl_add_u32 v5, v8, 6, v5\nv_lshl_add_u32 v5, v7, 3, v5\nv_add_u32 v5, s46, v5")
        A("v_mul_u32_u24 v6, 272, v8\nv_and_b32 v7, 15, v0\nv_lshl_add_u32 v6, v7, 4, v6\nv_add_u32 v6, s46, v6")
        A(f"s_lshl_b32 s46, s40, 2\ns_add_u32 s46, s46, {LDS_FL}\nv_mov_b32 v7, s46\nv_mov_b32 v8, {LDS_FL}")
        A("s_lshl_b32 s62, s40, 11\ns_add_u32 s62, s62, s51")
    at(RV[3] + 1, stats)
    assert RV[0] > RK[2 * NT - 1] + 1
    prev = 0
    for t in range(NT):
        a = max(RV[2 * t], prev + 1)
        for i in range(4): at(a + i, v1(t, i))
        b_ = max(RV[2 * t + 1], a + 4)
        if t == 0: assert b_ > kdone, (b_, kdone)
        if t == 1: assert a > kdone
        assert a + 3 < NS + 4 * (2 * t + RING) and b_ + 3 < NS + 4 * (2 * t + 1 + RING), (t, a, b_)
        if t < NT - 1:
            for i in range(4): at(b_ + i, v2(t, i))
        else: at(b_, v2last(t))
        prev = b_ + 3
    last = max(work)
    for k in range(last + 1):
        if k < 2 * NS:
            n, i = (k % NS) // 4, k % 4
            if k < NS:
                if i == 0 and n > 0:
                    A(f"s_add_u32 s44, s44, 0x8000\ns_add_u32 m0, s47, {(n%4)*4096}")
            elif i == 0 and n > 0: A("s_add_u32 s45, s45, 0x8000")
            if k >= win[k]: REQ(('ld', k - win[k]))
            if k < NS: VM(f"buffer_load_dwordx4 v{vKld[i]}, {sK}, s44 offen offset:{i*1024} {flags} lds", ('ld', k))
            else: VM(f"buffer_load_dwordx4 {vr(Vb(n,i))}, v{vVoff}, {sV}, s45 offen offset:{i*1024} {flags}", ('ld', k))
        if stamp and k == NS: STAMP(1)
        if enc >= 0 and k == enc: A("s_memrealtime s[98:99]")
        for f in work.get(k, []):
            if nocomp == 1 and f not in (setup2, stats): continue
            if nocomp == 2 and f not in (setup2, stats) and k >= RV[0] + 8: continue
            if nocomp == 3 and f not in (setup2, stats) and k < RV[0]: continue
            f()
    if nocomp: A("s_waitcnt vmcnt(0)")
    STAMP(2)
    if enc == 9999: A("s_memrealtime s[98:99]")
    if stamp: A("s_memtime s[82:83]")
    if cut == 1: A("s_branch L_fin")
    A("s_waitcnt lgkmcnt(0)\ns_barrier")
    vSt = 42; vX = 160; vMx = 50; vLs = 51; vF = 52; vAcc = 60
    A("ds_read_b128 v[76:79], v8")
    for w in range(4): A(f"ds_read_b64 v[{vSt+2*w}:{vSt+2*w+1}], v3 offset:{w*512}")
    for w in range(4):
        for i in range(4): A(f"ds_read_b128 {vr(vX+(w*4+i)*4)}, v4 offset:{w*16384+i*1024}")
    A("s_waitcnt lgkmcnt(15)")
    A("v_or3_b32 v76, v76, v77, v78\nv_or_b32 v76, v76, v79")
    A(f"v_max3_f32 v{vMx}, v{vSt}, v{vSt+2}, v{vSt+4}")
    A("v_readfirstlane_b32 s91, v76")
    A(f"v_max_f32 v{vMx}, v{vMx}, v{vSt+6}")
    for w in range(4): A(f"v_sub_f32 v{vF+2*w}, v{vSt+2*w}, v{vMx}")
    for w in range(4): A(f"v_exp_f32 v{vF+2*w}, v{vF+2*w}")
    A(f"v_mul_f32 v{vLs}, v{vF}, v{vSt+1}")
    for w in range(1, 4): A(f"v_fmac_f32 v{vLs}, v{vF+2*w}, v{vSt+2*w+1}")
    A("s_waitcnt lgkmcnt(12)")
    for i in range(0, 16, 2): A(f"v_pk_mul_f32 {vr(vAcc+i,2)}, {vr(vX+i,2)}, {vr(vF,2)} op_sel_hi:[1,0]")
    for w in range(1, 4):
        A(f"s_waitcnt lgkmcnt({12-4*w})")
        for i in range(0, 16, 2): A(f"v_pk_fma_f32 {vr(vAcc+i,2)}, {vr(vX+w*16+i,2)}, {vr(vF+2*w,2)}, {vr(vAcc+i,2)} op_sel_hi:[1,0,1]")
    STAMP(3)
    if enc == 9003: A("s_memrealtime s[98:99]")
    if cut == 2: A("s_branch L_comb")
    if cut == 3: A("s_branch L_fin")
    A("s_cmp_lg_u32 s91, 0\ns_cbranch_scc1 L_have")
    for i in range(4):
        A(f"buffer_store_dwordx4 {vr(vAcc+4*i)}, v{vVoff}, {sWs}, s63 offen offset:{i*1024} sc1")
    A(f"buffer_store_dwordx2 v[{vMx}:{vMx+1}], v{vTmp+1}, {sWs}, s89 offen sc1")
    poll(False)
    A("s_waitcnt vmcnt(0)")
    STAMP(4)
    pollres('s90')
    if force == 2: A("s_mov_b32 s90, 0\ns_cmp_lg_u32 s90, 0")
    if force == 3: A("s_bitcmp1_b32 s40, 1\ns_cselect_b32 s90, 0, s90\ns_cmp_lg_u32 s90, 0")
    A("s_cbranch_scc0 L_nos2")
    mbox_load('s57', 's58')
    A(f"L_nos2:\nv_mov_b32 v{vPoll}, s90\nds_write_b32 v7, v{vPoll} offset:16")
    A("s_waitcnt lgkmcnt(0)\ns_barrier")
    A("ds_read_b128 v[76:79], v8 offset:16\ns_waitcnt lgkmcnt(0)")
    A("v_or3_b32 v76, v76, v77, v78\nv_or_b32 v76, v76, v79\nv_readfirstlane_b32 s91, v76")
    A("s_cmp_lg_u32 s91, 0\ns_cbranch_scc1 L_have")
    A("s_cmp_lg_u32 s40, 0\ns_cbranch_scc1 L_noatomic")
    A(f"v_mov_b32 v{vPoll}, s60\nv_mov_b32 v76, s95")
    A("s_mov_b64 exec, 1")
    A(f"buffer_store_dword v76, v{vTmp}, {sWs}, s93 offen sc1")
    A(f"buffer_atomic_add v{vPoll}, v{vTmp}, {sDbg}, s61 offen sc0")
    A("s_waitcnt vmcnt(0)")
    A(f"ds_write_b32 v8, v{vPoll} offset:32")
    A("s_waitcnt lgkmcnt(0)")
    A("s_mov_b64 exec, -1")
    A("L_noatomic:\ns_barrier")
    A(f"ds_read_b32 v{vPoll}, v8 offset:32\ns_waitcnt lgkmcnt(0)")
    STAMP(5)
    cntres('s91')
    A("s_cbranch_scc0 L_fin")
    A("L_have:")
    A("s_cmp_lg_u32 s90, 0\ns_cbranch_scc1 L_wait")
    mbox_load('s57', 's58')
    A("L_wait:\ns_waitcnt vmcnt(0)")
    A("L_comb:\ns_nop 1")
    A(f"v_max_f32 v12, v{vMx}, v{vY+16}")
    A(f"v_sub_f32 v14, v{vMx}, v12\nv_sub_f32 v16, v{vY+16}, v12")
    A("v_exp_f32 v14, v14\nv_exp_f32 v16, v16")
    A(f"v_mul_f32 v12, v14, v{vLs}\nv_mul_f32 v13, v16, v{vY+17}\nv_add_f32 v12, v12, v13")
    A("v_rcp_f32 v12, v12")
    A("v_mul_f32 v14, v14, v12\nv_mul_f32 v16, v16, v12")
    for i in range(0, 16, 2): A(f"v_pk_mul_f32 {vr(vAcc+i,2)}, {vr(vAcc+i,2)}, v[14:15] op_sel_hi:[1,0]")
    for i in range(0, 16, 2): A(f"v_pk_mul_f32 {vr(vY+i,2)}, {vr(vY+i,2)}, v[16:17] op_sel_hi:[1,0]")
    for i in range(0, 16, 2): A(f"v_pk_add_f32 {vr(vAcc+i,2)}, {vr(vAcc+i,2)}, {vr(vY+i,2)}")
    for r in range(4):
        A(f"v_cvt_pk_bf16_f32 v{80+2*r}, v{vAcc+0*4+r}, v{vAcc+1*4+r}")
        A(f"v_cvt_pk_bf16_f32 v{81+2*r}, v{vAcc+2*4+r}, v{vAcc+3*4+r}")
        A(f"ds_write_b64 v5, v[{80+2*r}:{81+2*r}] offset:{r*16}")
    A("s_waitcnt lgkmcnt(0)")
    A("ds_read_b128 v[88:91], v6\nds_read_b128 v[92:95], v6 offset:1088")
    A("s_waitcnt lgkmcnt(1)")
    A(f"buffer_store_dwordx4 v[88:91], v{vVoff}, {sOut}, s62 offen {oflags}")
    A("s_waitcnt lgkmcnt(0)")
    A(f"buffer_store_dwordx4 v[92:95], v{vVoff}, {sOut}, s62 offen offset:1024 {oflags}")
    if stamp: A("s_waitcnt vmcnt(0)")
    STAMP(6)
    A("L_fin:")
    if enc == 9004: A("s_waitcnt vmcnt(0)\ns_memrealtime s[98:99]")
    if gpad:
        A("s_waitcnt vmcnt(0) lgkmcnt(0)\ns_not_b32 s88, s84\nv_mov_b32 v100, s88\nv_mov_b32 v102, s84\nv_mov_b32 v110, 0\ns_mov_b64 exec, 1")
        A("buffer_atomic_umax v100, v110, s[36:39], 0 offen\nbuffer_atomic_umax v102, v110, s[36:39], 0 offen offset:4\ns_waitcnt vmcnt(0)")
        A(f"L_pad0:\ns_memrealtime s[86:87]\ns_waitcnt lgkmcnt(0)\ns_sub_u32 s86, s86, s84\ns_cmp_lt_u32 s86, {(padto-25)*100}\ns_cbranch_scc1 L_pad0")
        A("buffer_load_dword v101, v110, s[36:39], 0 offen sc1\ns_waitcnt vmcnt(0)\nv_readfirstlane_b32 s84, v101\ns_nop 3\ns_not_b32 s84, s84")
    if enc >= 0:
        A("s_waitcnt lgkmcnt(0)\ns_sub_u32 s98, s98, s84\ns_add_u32 s84, s84, s98")
    if padto:
        A(f"s_waitcnt vmcnt(0)\nL_pad:\ns_memrealtime s[86:87]\ns_waitcnt lgkmcnt(0)\ns_sub_u32 s86, s86, s84\ns_cmp_lt_u32 s86, {padto*100}\ns_cbranch_scc1 L_pad")
    if stamp:
        A("s_waitcnt lgkmcnt(0)")
        A("s_lshl_b32 s46, s2, 2\ns_add_u32 s46, s46, s40\ns_lshl_b32 s46, s46, 6\ns_add_u32 s46, s46, 0x600000")
        for i in range(7): A(f"v_mov_b32 v{100+i}, s{64+2*i}")
        A("s_getreg_b32 s47, hwreg(HW_REG_XCC_ID)\nv_mov_b32 v107, s47")
        A("s_sub_u32 s82, s82, s80\nv_mov_b32 v108, s82\nv_mov_b32 v109, 0x7fffffff")
        A("v_mov_b32 v110, 0\ns_mov_b64 exec, 1")
        A("buffer_store_dwordx4 v[100:103], v110, s[32:35], s46 offen")
        A("buffer_store_dwordx4 v[104:107], v110, s[32:35], s46 offen offset:16")
        A("buffer_store_dwordx2 v[108:109], v110, s[32:35], s46 offen offset:32")
    A("L_end:\ns_endpgm")
    body, added = fix(o)
    head = HEADER + f"; @launch grid=({NWG},1,1) block=({NW*64},1,1) lds={lds}\n" + \
        f'.amdgcn_target "amdgcn-amd-amdhsa--gfx950"\n.text\n.globl {KN}\n.p2align 8\n.type {KN},@function\n{KN}:\n'
    tail = f"""
.section .rodata,"a"
.p2align 6
.amdhsa_kernel {KN}
  .amdhsa_next_free_vgpr {nv + 256}
  .amdhsa_next_free_sgpr 100
  .amdhsa_accum_offset {nv}
  .amdhsa_group_segment_fixed_size 0
  .amdhsa_kernarg_size 48
  .amdhsa_user_sgpr_count 2
  .amdhsa_user_sgpr_kernarg_segment_ptr 1
  .amdhsa_system_sgpr_workgroup_id_x 1
.end_amdhsa_kernel
"""
    open(path, 'w').write(head + "\n".join(body) + tail)
    print(f"{path}: {len(body)} lines, {added} nop states added", file=sys.stderr)
if __name__ == "__main__":
    kw = {}
    for a in sys.argv[2:]:
        k, v = a.split('=')
        kw[k] = int(v) if (v.lstrip('-').isdigit() and k not in ('wk','wv')) else v.replace('+', ' ')
    gen(sys.argv[1], **kw)
```

```python
import sys, struct, math
from hz import fix
KN = "standalone__gqa_softmax__sampling_kernel"
HEADER = """; Kernarg layout for this problem (48 bytes, ptrs only, base s[0:1]):
"""
def f2u(f): return struct.unpack('<I', struct.pack('<f', f))[0]

def gen(path, W=5, flags='nt', pairmap='adj', stamp=0, touch=0, NT=32, pre=0, padto=0, oflags='', gpad=0, wk='', wv='', w2=0, x2=0, RING=4, cut=0, nocomp=0, force=0, late=0, clrslot=-1, noclr=0, notok=0, nospec=0, P1=6, qflags='', fflags='sc1', w1=0, x1=0, y1=0, pf=0, enc=-1, w0=0, x0=0, qpos=3, boost='', pa=8, ra=3, pb=8, rb=7, enca=-1, fb=0, t1=10, t2=14, fbfl='nt', fbst=''):
    NW = 4; NWG = 256
    o = []; A = o.append
    vm = []; st = {'done': 0}
    def VM(text, tag): A(text); vm.append(tag)
    def WAITN(n):
        A(f"s_waitcnt vmcnt({n})"); st['done'] = max(st['done'], len(vm) - n)
    def REQ(tag):
        idx = len(vm) - 1 - vm[::-1].index(tag)
        if idx >= st['done']: WAITN(len(vm) - idx - 1)
    LDS_ST = 65536; LDS_BN = 65536 + 2048
    LDS_FL = LDS_BN + 4 * 2176
    LDS_Q = 77824
    lds = LDS_Q + 8192
    SLOT = 5120; WS_A = 0x500000; WS_FB = 0x800000; TOKEN = 0x13579bdf
    vKld = [1, 2, 3, 4]; vKrd = [5, 6, 7, 8]; vVoff = 9; vQoff = 10
    vMp, vT0, vT1 = 12, 13, 14
    vM = [15, 11]; vA = [16, 18]; vL = [20, 21]; vTmp = 22; vFB = 240
    vAl = 24
    vQ = 56; vVT = 56
    vKF = 88; vS = 120; vO = 88
    vP = 152
    vV = 160
    nv = 160 + 16 * RING
    if fb: nv = 244
    S = lambda b, h, T, r=0: vS + b * 16 + (h * 2 + T) * 4 + r
    P = lambda h, u=0: vP + h * 4 + u
    aP = lambda t, h, u=0: t * 8 + h * 4 + u
    VT = lambda j, u=0: vVT + j * 4 + u
    O = lambda h, j, r=0: vO + (h * 8 + j) * 4 + r
    Vb = lambda n, i, w=0: vV + (n % RING) * 16 + i * 4 + w
    KF = lambda T, s: vKF + (T * 4 + s) * 4
    Q = lambda h, s: vQ + (h * 4 + s) * 4
    vr = lambda r, n=4: f"v[{r}:{r+n-1}]"
    ar = lambda r, n=4: f"a[{r}:{r+n-1}]"
    sK, sV, sQ, sOut, sWs, sDbg = 's[16:19]', 's[20:23]', 's[24:27]', 's[28:31]', 's[32:35]', 's[36:39]'
    def STAMP(i):
        if stamp: A(f"s_memrealtime s[{64+2*i}:{65+2*i}]")
    A(f"s_cmp_ge_u32 s2, {NWG}\ns_cbranch_scc1 L_end")
    A("s_load_dwordx8 s[4:11], s[0:1], 0\ns_load_dwordx4 s[12:15], s[0:1], 32")
    STAMP(0)
    if padto: A("s_memrealtime s[84:85]")
    if stamp:
        A("s_memtime s[80:81]\ns_mov_b32 s83, 0")
        for i in range(1, 8): A(f"s_mov_b64 s[{64+2*i}:{65+2*i}], 0")
    if late:
        A(f"s_bitcmp1_b32 s2, 0\ns_cbranch_scc0 L_go\ns_memrealtime s[84:85]\ns_waitcnt lgkmcnt(0)\nL_late:\ns_memrealtime s[86:87]\ns_waitcnt lgkmcnt(0)\ns_sub_u32 s86, s86, s84\ns_cmp_lt_u32 s86, {late*100}\ns_cbranch_scc1 L_late\nL_go:")
    if pf:
        A("s_getpc_b64 s[96:97]\nL_pc:")
        A(f"s_lshr_b32 s46, s2, 3\ns_lshl_b32 s46, s46, 11")
        A(f"v_lshl_add_u32 v{vV+4}, v0, 3, s46")
        A(f"v_min_u32 v{vV+4}, L_end - L_pc - 4, v{vV+4}")
        VM(f"global_load_dword v{vV+5}, v{vV+4}, s[96:97]", 'x')
    A("v_lshrrev_b32 v1, 6, v0\nv_and_b32 v0, 63, v0")
    A("v_and_b32 v11, 15, v0           ; p / m / n")
    A("v_readfirstlane_b32 s40, v1")
    A("v_lshrrev_b32 v12, 4, v0        ; q / g")
    A("v_lshlrev_b32 v13, 2, v12       ; 4q")
    A("v_xor_b32 v13, v13, v11         ; p ^ 4q")
    A("v_lshlrev_b32 v14, 8, v12       ; q*256")
    for i in range(4):
        A(f"v_xor_b32 v15, {i}, v13\nv_lshl_add_u32 v{vKld[i]}, v15, 4, v14")
    if pairmap == 'adj':
        A("s_lshr_b32 s41, s2, 1\ns_and_b32 s42, s2, 1")
    else:
        A("s_and_b32 s41, s2, 127\ns_lshr_b32 s42, s2, 7")
    A("s_lshl_b32 s43, s42, 2\ns_add_u32 s43, s43, s40      ; widx")
    A("s_lshl_b32 s44, s43, 12      ; K soffset\ns_mov_b32 s45, s44")
    A("s_lshl_b32 s46, s41, 21")
    A("s_lshl_b32 s47, s40, 14")
    A("s_mov_b32 s18, 0x200000\ns_mov_b32 s19, 0x20000")
    A("s_mov_b32 m0, s47")
    A("s_mov_b32 s26, 0x100000\ns_mov_b32 s27, 0x20000")
    A("s_lshl_b32 s51, s41, 13")
    A("s_lshl_b32 s52, s40, 11\ns_add_u32 s62, s52, s51")
    A(f"s_add_u32 s52, s52, {LDS_Q}")
    A("s_and_b32 s54, s40, 1\ns_lshl_b32 s53, s54, 5")
    A(f"v_xor_b32 v{vV+6}, s53, v{vKld[0]}\nv_xor_b32 v{vV+7}, s53, v{vKld[1]}")
    if enc == 9000: A("s_memrealtime s[98:99]")
    A("s_waitcnt lgkmcnt(0)")
    if enc == 9001: A("s_memrealtime s[98:99]")
    A("s_add_u32 s16, s6, s46\ns_addc_u32 s17, s7, 0")
    NS = NT * 8
    wk = str(wk) or str(W); wv = str(wv) or str(W)
    win = [int(wk[k % len(wk)], 16) for k in range(NS)] + [int(wv[k % len(wv)], 16) for k in range(NS)]
    if w2:
        for k in range(2 * NS - x2, 2 * NS): win[k] = w2
    if w0:
        for k in range(x0): win[k] = w0
    if w1:
        for k in range(NS - x1, NS + y1): win[k] = w1
    skip = {}
    if boost:
        for k in range(32, 2 * NS - x2):
            if k % pa == ra: skip[k] = 'a'
            elif k % pb == rb: skip[k] = 'b'
        for k in skip: win[k] += 1
    win += [win[-1]] * 64
    def ready(idx):
        k = idx + 1
        while k - win[k] < idx: k += 1
        return k
    RK = [ready(4 * n + 3) for n in range(2 * NT)]
    for n in range(1, 2 * NT): RK[n] = max(RK[n], RK[n - 1] + 4)
    RV = [ready(NS + 4 * n + 3) for n in range(2 * NT)]
    RV[0] = max(RV[0], RK[-1] + 4)
    for n in range(1, 2 * NT): RV[n] = max(RV[n], min(RV[n - 1] + 4, NS + 4 * n + 4 * RING - 4 - 1))
    work = {}
    def at(slot, fn): work.setdefault(slot, []).append(fn)
    def qload():
        A("s_mov_b32 s24, s4\ns_mov_b32 s25, s5\ns_mov_b32 m0, s52")
        VM(f"buffer_load_dwordx4 v{vV+6}, {sQ}, s62 offen {qflags} lds", 'q')
        VM(f"buffer_load_dwordx4 v{vV+7}, {sQ}, s62 offen offset:1024 {qflags} lds", 'q')
        if qpos % 4 != 3: A(f"s_add_u32 m0, s47, {((qpos//4)%4)*4096}")
    at(qpos, qload)
    def setup2():
        A("v_and_b32 v13, 3, v11\nv_lshlrev_b32 v13, 2, v13\nv_lshrrev_b32 v14, 2, v11\nv_add_u32 v13, v13, v14    ; rho")
        A(f"v_xor_b32 v{vV+8}, v12, v13\nv_lshlrev_b32 v{vV+8}, 4, v{vV+8}\nv_lshl_add_u32 v{vV+8}, v11, 8, v{vV+8}")
        A(f"v_add_u32 v{vV+8}, {LDS_Q}, v{vV+8}")
        for s in range(1, 4): A(f"v_xor_b32 v{vV+8+s}, {64*s}, v{vV+8}")
        A("v_lshlrev_b32 v13, 8, v13\nv_add_u32 v13, s47, v13")
        A("v_xor_b32 v14, v12, v11      ; g ^ m")
        for s in range(4):
            A(f"v_xor_b32 v15, {4*s}, v14\nv_lshl_add_u32 v{vKrd[s]}, v15, 4, v13")
        c = math.log2(math.e) / math.sqrt(128.0)
        A(f"s_mov_b32 s48, 0x{f2u(c):08x}     ; log2(e)/sqrt(128)")
        A(f"v_mov_b32 v{vMp}, 0xff800000")
        A(f"v_mov_b32 v{vL[0]}, 0\nv_mov_b32 v{vL[1]}, 0")
        if enc == 9002: A("s_memrealtime s[98:99]")
    at(win[0] - 1, setup2)
    def qread():
        REQ('q')
        A("s_barrier")
        for h in range(2):
            for s in range(4): A(f"ds_read_b128 {vr(Q(h,s))}, v{vV+8+s} offset:{h*4096}")
    at(RK[0], qread)
    px = 1 if pairmap == 'adj' else 128
    def setup3():
        A("s_add_u32 s20, s8, s46\ns_addc_u32 s21, s9, 0\ns_mov_b32 s22, 0x200000\ns_mov_b32 s23, 0x20000")
        A(f"v_lshlrev_b32 v{vVoff}, 4, v0")
        A("s_mov_b32 s28, s10\ns_mov_b32 s29, s11\ns_mov_b32 s30, 0x100000\ns_mov_b32 s31, 0x20000")
        A("s_mov_b32 s32, s14\ns_mov_b32 s33, s15\ns_mov_b32 s34, 0x1000000\ns_mov_b32 s35, 0x20000")
        A("s_mov_b32 s36, s12\ns_mov_b32 s37, s13\ns_mov_b32 s38, 256\ns_mov_b32 s39, 0x20000")
        A("s_mov_b32 s49, 0x05040100\ns_mov_b32 s50, 0x07060302")
        if boost:
            tab = sum(int(boost[c]) << (2 * c) for c in range(4))
            A("s_getreg_b32 s88, hwreg(HW_REG_XCC_ID, 0, 1)\ns_lshl_b32 s88, s88, 2")
            A("s_lshr_b32 s90, s2, 3\ns_xor_b32 s90, s90, s2\ns_and_b32 s90, s90, 1\ns_lshl_b32 s90, s90, 1\ns_add_u32 s88, s88, s90")
            A(f"s_lshr_b32 s88, {tab}, s88\ns_and_b32 s88, s88, 3")
            A("s_mov_b32 s90, s88\ns_mov_b32 s91, 0\ns_mov_b64 vcc, s[90:91]")
    def setup4():
        A("s_lshl_b32 s55, s2, 2\ns_add_u32 s55, s55, s40")
        A(f"s_xor_b32 s56, s55, {px*4}")
        A(f"s_mul_i32 s63, s55, {SLOT}")
        A(f"s_mul_i32 s57, s56, {SLOT}")
        A(f"s_add_u32 s58, s57, 4096\ns_add_u32 s89, s63, 4096")
        if fb: A("s_and_b32 s59, s41, 3\ns_lshl_b32 s59, s59, 3\ns_lshl_b32 s60, 1, s59\ns_and_b32 s61, s41, 0x7c")
        else: A("s_and_b32 s59, s41, 1\ns_lshl_b32 s59, s59, 4\ns_lshl_b32 s60, 1, s59\ns_lshr_b32 s61, s41, 1\ns_lshl_b32 s61, s61, 2")
        if fb:
            A("s_and_b32 s42, s2, 7\ns_lshl_b32 s42, s42, 4\ns_lshr_b32 s43, s2, 4\ns_add_u32 s42, s42, s43\ns_add_u32 s42, s42, 128")
            A("s_lshr_b32 s43, s2, 3\ns_and_b32 s43, s43, 1\ns_or_b32 s43, s43, s40\ns_cmp_eq_u32 s43, 0\ns_cselect_b32 s42, s42, 0x1000")
            A(f"v_lshlrev_b32 v{vFB}, 1, v0")
        A(f"v_mov_b32 v{vTmp}, 0\nv_lshlrev_b32 v{vTmp+1}, 3, v0")
        A(f"s_xor_b32 s92, s2, {px}\ns_lshl_b32 s92, s92, 7\ns_add_u32 s92, s92, {WS_A}")
        A(f"s_lshl_b32 s93, s2, 7\ns_add_u32 s93, s93, {WS_A}")
        VM(f"buffer_load_dword v{vV}, v{vTmp}, {sWs}, s92 offen {fflags}", 'f0')
        VM(f"buffer_load_dword v{vV+1}, v{vTmp}, {sWs}, s93 offen {fflags}", 'f0')
    def touches():
        VM(f"buffer_load_dword v{vV+2}, v{vTmp}, {sV}, s45 offen {flags}", 'x')
        VM(f"buffer_load_dword v{vV+2}, v{vTmp}, {sOut}, s62 offen nt", 'x')
        VM(f"buffer_load_dword v{vV+2}, v{vTmp}, {sWs}, s89 offen offset:768 nt", 'x')
    at(RK[0] + 2, setup3)
    at(RK[0] + 3, setup4)
    if touch: at(touch, touches)
    vPoll = vQoff
    if fb:
        def fb_io(c):
            def f():
                A(f"v_mov_b32 v{vFB+1}, {c}")
                A("s_mov_b64 exec, 1")
                VM(f"buffer_store_byte v{vFB+1}, v{vTmp}, {sDbg}, s42 offen {fbst}", 'fbs')
                A("s_mov_b64 exec, -1")
                VM(f"buffer_load_ushort v{vQoff}, v{vFB}, {sDbg}, 0 offen offset:128 {fbfl}", 'fbl')
            return f
        def fb_use(c):
            def f():
                REQ('fbl')
                A(f"v_and_b32 v{vFB+1}, 0xff, v{vQoff}\nv_lshrrev_b32 v{vQoff}, 8, v{vQoff}")
                A(f"v_cmp_le_u32 vcc, {c}, v{vFB+1}\nv_cmp_le_u32 s[90:91], {c}, v{vQoff}")
                A("s_bcnt1_i32_b64 s88, vcc\ns_bcnt1_i32_b64 s90, s[90:91]\ns_add_u32 s90, s90, s88")
                if stamp: A(f"s_lshl_b32 s83, s83, 5\ns_or_b32 s83, s83, s90")
                A(f"s_cmp_ge_u32 s90, {t2}\ns_cselect_b32 s88, 2, 0")
                A(f"s_cmp_ge_u32 s90, {t1}\ns_cselect_b64 vcc, -1, 0")
            return f
        c = 1
        for k in range(fb + 2, 2 * NS - x2 - 8, fb):
            at(k, fb_io(c)); at(k + 8, fb_use(c)); c += 1
    def flag0():
        REQ('f0')
        A(f"v_readfirstlane_b32 s94, v{vV}\nv_readfirstlane_b32 s95, v{vV+1}\ns_nop 1\ns_add_u32 s95, s95, 1")
    at(RK[0] + 3 + 16, flag0)
    def poll(track):
        t = f"buffer_load_dword v{vPoll}, v{vTmp}, {sWs}, s92 offen sc1"
        if track: VM(t, 'poll')
        else: A(t)
    def pollres(dst):
        A(f"v_readfirstlane_b32 {dst}, v{vPoll}")
        A(f"s_xor_b32 {dst}, {dst}, s94")
    def cntres(dst):
        A(f"v_readfirstlane_b32 {dst}, v{vPoll}")
        A(f"s_lshr_b32 {dst}, {dst}, s59\ns_and_b32 {dst}, {dst}, 0xff")
    if cut != 1: at(2 * NS - P1, lambda: poll(True))
    def kread(t, T):
        def f():
            n = 2 * t + T
            REQ(('ld', 4 * n + 3))
            for s in range(4):
                A(f"ds_read_b128 {vr(KF(T,s))}, v{vKrd[s]} offset:{(n%4)*4096}")
        return f
    def kmma(t, T, extra=None):
        def f():
            A("s_waitcnt lgkmcnt(0)")
            b = t & 1; k = 0
            for s in range(4):
                for h in range(2):
                    cin = '0' if s == 0 else vr(S(b, h, T))
                    A(f"v_mfma_f32_16x16x32_bf16 {vr(S(b,h,T))}, {vr(KF(T,s))}, {vr(Q(h,s))}, {cin}")
                    if extra and k < len(extra) and (s * 2 + h) % 2 == 1: A(extra[k]); k += 1
        return f
    def smax(t):
        def f():
            b = t & 1; tt = [vT0, vT1]
            for h in range(2): A(f"v_max3_f32 v{tt[h]}, v{S(b,h,0,0)}, v{S(b,h,0,1)}, v{S(b,h,0,2)}")
            for h in range(2): A(f"v_max3_f32 v{tt[h]}, v{tt[h]}, v{S(b,h,0,3)}, v{S(b,h,1,0)}")
            for h in range(2): A(f"v_max3_f32 v{tt[h]}, v{tt[h]}, v{S(b,h,1,1)}, v{S(b,h,1,2)}")
            for h in range(2): A(f"v_max_f32 v{tt[h]}, v{tt[h]}, v{S(b,h,1,3)}")
            A(f"v_permlane32_swap_b32 v{vT0}, v{vT1}")
            A(f"v_max_f32 v{vT0}, v{vT0}, v{vT1}")
            A(f"v_mov_b32 v{vT1}, v{vT0}")
            A(f"v_permlane16_swap_b32 v{vT0}, v{vT1}")
            A(f"v_max_f32 v{vT0}, v{vT0}, v{vT1}")
            A(f"v_mul_f32 v{vT0}, s48, v{vT0}")
            A(f"v_max_f32 v{vM[0]}, v{vMp}, v{vT0}")
            A(f"v_sub_f32 v{vT1}, v{vMp}, v{vM[0]}")
            A(f"v_exp_f32 v{vAl+t}, v{vT1}")
            A(f"v_mov_b32 v{vMp}, v{vM[0]}")
            A(f"v_mov_b32 v{vM[1]}, v{vM[0]}")
            A(f"v_mov_b32 v{vA[0]}, v{vAl+t}")
            A(f"v_mov_b32 v{vA[1]}, v{vAl+t}")
            A(f"v_permlane32_swap_b32 v{vM[0]}, v{vM[1]}")
            A(f"v_permlane32_swap_b32 v{vA[0]}, v{vA[1]}")
        return f
    def sregs(b): return [S(b, h, T, r) for h in range(2) for T in range(2) for r in range(4)]
    def sfma(t):
        def f():
            b = t & 1
            for i, r in enumerate(sregs(b)): A(f"v_fma_f32 v{r}, v{r}, s48, -v{vM[i>>3]}")
            for r in sregs(b)[:4]: A(f"v_exp_f32 v{r}, v{r}")
        return f
    def sexp(t, lo, hi):
        def f():
            for r in sregs(t & 1)[lo:hi]: A(f"v_exp_f32 v{r}, v{r}")
        return f
    def spack(t):
        def f():
            b = t & 1
            for h in range(2):
                for u in range(4):
                    T, x = u >> 1, u & 1
                    A(f"v_cvt_pk_bf16_f32 v{P(h,u)}, v{S(b,h,T,2*x)}, v{S(b,h,T,2*x+1)}")
            for h in range(2):
                for u in range(4): A(f"v_accvgpr_write_b32 a{aP(t,h,u)}, v{P(h,u)}")
        return f
    def lsum(t):
        def f():
            b = t & 1
            for h in range(2): A(f"v_fma_f32 v{vL[h]}, v{vL[h]}, v{vA[h]}, v{S(b,h,0,0)}")
            for idx in range(1, 8):
                for h in range(2): A(f"v_add_f32 v{vL[h]}, v{vL[h]}, v{S(b,h,idx>>2,idx&3)}")
        return f
    for t in range(NT):
        a, b_ = RK[2 * t], RK[2 * t + 1]
        assert b_ >= a + 2
        if t > 0: assert RK[2 * t - 1] + 3 < a + 1 < RK[2 * t - 1] + 6 or (RK[2*t-1] + 3, a + 1)
        assert (a + 1 < 4 * (2 * t + 4) or 2 * t + 4 >= 2 * NT) and (b_ + 1 < 4 * (2 * t + 1 + 4) or 2 * t + 5 >= 2 * NT)
        at(a, kread(t, 0))
        ex = [f"v_exp_f32 v{r}, v{r}" for r in sregs((t - 1) & 1)[12:16]] if t > 0 else None
        at(a + 1, kmma(t, 0, ex))
        at(b_, kread(t, 1))
        at(b_ + 1, kmma(t, 1))
        at(b_ + 2, smax(t))
        at(b_ + 3, sfma(t))
        at(b_ + 4, sexp(t, 4, 12))
        nxt = RK[2 * t + 2] + 1 if t < NT - 1 else b_ + 5
        assert nxt > b_ + 3
        if t == NT - 1: at(b_ + 5, sexp(t, 12, 16))
        at(max(nxt, b_ + 4) + 1, spack(t))
        at(max(nxt, b_ + 4) + 2, lsum(t))
        if t < NT - 1: assert max(nxt, b_ + 4) + 2 <= RK[2 * t + 3] + 1
    kdone = RK[2 * NT - 1] + 7
    def perm(t, j, u):
        T, x, w = u >> 1, u & 1, j >> 1
        n = 2 * t + T
        REQ(('ld', NS + 4 * n + 2 * x + 1))
        A(f"v_perm_b32 v{VT(j,u)}, v{Vb(n,2*x+1,w)}, v{Vb(n,2*x,w)}, {'s49' if j%2==0 else 's50'}")
    def v1(t, i):
        def f():
            if t > 0:
                if i == 0:
                    A(f"v_mov_b32 v{vA[0]}, v{vAl+t}\nv_mov_b32 v{vA[1]}, v{vAl+t}")
                    A(f"v_permlane32_swap_b32 v{vA[0]}, v{vA[1]}")
                for j in (2 * i, 2 * i + 1):
                    for h in range(2):
                        for r in (0, 2):
                            A(f"v_pk_mul_f32 {vr(O(h,j,r),2)}, {vr(O(h,j,r),2)}, {vr(vA[h],2)} op_sel_hi:[1,0]")
            for j in (2 * i, 2 * i + 1):
                for u in (0, 1): perm(t, j, u)
        return f
    def pv(t, j):
        for h in range(2):
            cin = '0' if t == 0 else vr(O(h, j))
            A(f"v_mfma_f32_16x16x32_bf16 {vr(O(h,j))}, {vr(VT(j))}, {ar(aP(t,h))}, {cin}")
    def v2(t, i):
        def f():
            for j in (2 * i, 2 * i + 1):
                for u in (2, 3): perm(t, j, u)
            for j in (2 * i, 2 * i + 1): pv(t, j)
        return f
    vY = 24
    def mbox_load(so_d, so_s, track=False):
        E = (lambda x: VM(x, 'y')) if track else A
        E(f"buffer_load_dwordx2 v[{vY+16}:{vY+17}], v{vTmp+1}, {sWs}, {so_s} offen sc1")
        for i in range(4): E(f"buffer_load_dwordx4 {vr(vY+4*i)}, v{vVoff}, {sWs}, {so_d} offen offset:{i*1024} sc1")
    def owrite(j):
        for h in range(2): A(f"ds_write_b128 v{1 if j < 4 else 2}, {vr(O(h,j))} offset:{(h*8+j)*1024}")
    def v2last(t):
        def f():
            for j in range(8): perm(t, j, 2)
            perm(t, 0, 3); perm(t, 1, 3)
            if cut != 1:
                REQ('poll')
                pollres('s90')
                if force in (1, 2, 3): A("s_mov_b32 s90, 0\ns_cmp_lg_u32 s90, 0")
                if force == 4: A("s_bitcmp1_b32 s40, 0\ns_cselect_b32 s90, 0, s90\ns_cmp_lg_u32 s90, 0")
                A("s_cbranch_scc0 L_nos1")
                mbox_load('s57', 's58')
                A(f"L_nos1:\nv_mov_b32 v{vPoll}, s90\nds_write_b32 v7, v{vPoll}")
            for j in range(8):
                pv(t, j)
                if j + 2 < 8: perm(t, j + 2, 3)
                if j >= 3 and cut != 1: owrite(j - 3)
            if cut != 1:
                for j in range(5, 8): owrite(j)
        return f
    def stats():
        A(f"v_permlane32_swap_b32 v{vL[0]}, v{vL[1]}")
        A(f"v_add_f32 v{vT0}, v{vL[0]}, v{vL[1]}")
        A(f"v_mov_b32 v{vT1}, v{vT0}")
        A(f"v_permlane16_swap_b32 v{vT0}, v{vT1}")
        A(f"v_add_f32 v{vT0}, v{vT0}, v{vT1}")
        A(f"s_lshl_b32 s46, s40, 9\ns_add_u32 s46, s46, {LDS_ST}")
        A(f"v_lshl_add_u32 v{vT1}, v0, 3, s46")
        A(f"ds_write_b64 v{vT1}, v[{vMp}:{vMp+1}]")
        A(f"v_add_u32 v1, s47, v{vVoff}")
        A(f"v_xor_b32 v2, 0x80, v1")
        A("s_lshr_b32 s53, s40, 1       ; h\ns_and_b32 s54, s40, 1")
        A("v_and_b32 v6, 7, v0          ; q'\nv_bfe_u32 v7, v0, 3, 1      ; jh\nv_lshrrev_b32 v8, 4, v0     ; g")
        A("s_lshl_b32 s46, s54, 3\nv_add_u32 v5, s46, v6       ; q")
        A(f"s_lshl_b32 s46, s53, 8\ns_add_u32 s46, s46, {LDS_ST}")
        A(f"v_lshl_add_u32 v3, v5, 3, s46")
        A("v_lshlrev_b32 v4, 3, v7\nv_xor_b32 v4, v4, v5\nv_lshlrev_b32 v4, 4, v4      ; (q ^ 8jh)*16")
        A("v_lshl_add_u32 v4, v8, 8, v4\nv_lshl_add_u32 v4, v7, 12, v4")
        A("s_lshl_b32 s46, s53, 13\nv_add_u32 v4, s46, v4")
        A(f"s_mul_i32 s46, s40, 2176\ns_add_u32 s46, s46, {LDS_BN}")
        A("v_mul_u32_u24 v5, 272, v6\nv_lshl_add_u32 v5, v8, 6, v5\nv_lshl_add_u32 v5, v7, 3, v5\nv_add_u32 v5, s46, v5")
        A("v_mul_u32_u24 v6, 272, v8\nv_and_b32 v7, 15, v0\nv_lshl_add_u32 v6, v7, 4, v6\nv_add_u32 v6, s46, v6")
        A(f"s_lshl_b32 s46, s40, 2\ns_add_u32 s46, s46, {LDS_FL}\nv_mov_b32 v7, s46\nv_mov_b32 v8, {LDS_FL}")
    at(RV[3] + 1, stats)
    assert RV[0] > RK[2 * NT - 1] + 1
    prev = 0
    for t in range(NT):
        a = max(RV[2 * t], prev + 1)
        for i in range(4): at(a + i, v1(t, i))
        b_ = max(RV[2 * t + 1], a + 4)
        if t == 0: assert b_ > kdone, (b_, kdone)
        if t == 1: assert a > kdone
        assert a + 3 < NS + 4 * (2 * t + RING) and b_ + 3 < NS + 4 * (2 * t + 1 + RING), (t, a, b_)
        if t < NT - 1:
            for i in range(4): at(b_ + i, v2(t, i))
        else: at(b_, v2last(t))
        prev = b_ + 3
    last = max(work)
    for k in range(last + 1):
        if k < 2 * NS:
            n, i = (k % NS) // 4, k % 4
            if k < NS:
                if i == 0 and n > 0:
                    A(f"s_add_u32 s44, s44, 0x8000\ns_add_u32 m0, s47, {(n%4)*4096}")
            elif i == 0 and n > 0: A("s_add_u32 s45, s45, 0x8000")
            if k >= win[k]: REQ(('ld', k - win[k]))
            if k in skip:
                idx = len(vm) - 1 - vm[::-1].index(('ld', k - win[k] + 1))
                if idx >= st['done']:
                    if skip[k] == 'a': A(f"s_cbranch_vccnz L_sk{k}")
                    else: A(f"s_bitcmp1_b32 s88, 1\ns_cbranch_scc1 L_sk{k}")
                    A(f"s_waitcnt vmcnt({len(vm) - idx - 1})\nL_sk{k}:")
            if k < NS: VM(f"buffer_load_dwordx4 v{vKld[i]}, {sK}, s44 offen offset:{i*1024} {flags} lds", ('ld', k))
            else: VM(f"buffer_load_dwordx4 {vr(Vb(n,i))}, v{vVoff}, {sV}, s45 offen offset:{i*1024} {flags}", ('ld', k))
        if stamp and k == NS: STAMP(1)
        if enc >= 0 and k == enc: A("s_memrealtime s[98:99]")
        if enca >= 0 and k == enca: A("s_memrealtime s[96:97]")
        for f in work.get(k, []):
            if nocomp == 1 and f not in (setup2, setup3, setup4, qload, stats): continue
            if nocomp == 2 and f not in (setup2, setup3, setup4, qload, stats) and k >= RV[0] + 8: continue
            if nocomp == 3 and f not in (setup2, setup3, setup4, qload, stats) and k < RV[0]: continue
            f()
    if nocomp: A("s_waitcnt vmcnt(0)")
    STAMP(2)
    if enc == 9999: A("s_memrealtime s[98:99]")
    if enca == 9999: A("s_memrealtime s[96:97]")
    if stamp: A("s_mov_b32 s79, s83\ns_memtime s[82:83]")
    if cut == 1: A("s_branch L_fin")
    A("s_waitcnt lgkmcnt(0)\ns_barrier")
    vSt = 42; vX = 160; vMx = 50; vLs = 51; vF = 52; vAcc = 60
    A("ds_read_b128 v[76:79], v8")
    for w in range(4): A(f"ds_read_b64 v[{vSt+2*w}:{vSt+2*w+1}], v3 offset:{w*512}")
    for w in range(4):
        for i in range(4): A(f"ds_read_b128 {vr(vX+(w*4+i)*4)}, v4 offset:{w*16384+i*1024}")
    A("s_waitcnt lgkmcnt(15)")
    A("v_or3_b32 v76, v76, v77, v78\nv_or_b32 v76, v76, v79")
    A(f"v_max3_f32 v{vMx}, v{vSt}, v{vSt+2}, v{vSt+4}")
    A("v_readfirstlane_b32 s91, v76")
    A(f"v_max_f32 v{vMx}, v{vMx}, v{vSt+6}")
    for w in range(4): A(f"v_sub_f32 v{vF+2*w}, v{vSt+2*w}, v{vMx}")
    for w in range(4): A(f"v_exp_f32 v{vF+2*w}, v{vF+2*w}")
    A(f"v_mul_f32 v{vLs}, v{vF}, v{vSt+1}")
    for w in range(1, 4): A(f"v_fmac_f32 v{vLs}, v{vF+2*w}, v{vSt+2*w+1}")
    A("s_waitcnt lgkmcnt(12)")
    for i in range(0, 16, 2): A(f"v_pk_mul_f32 {vr(vAcc+i,2)}, {vr(vX+i,2)}, {vr(vF,2)} op_sel_hi:[1,0]")
    for w in range(1, 4):
        A(f"s_waitcnt lgkmcnt({12-4*w})")
        for i in range(0, 16, 2): A(f"v_pk_fma_f32 {vr(vAcc+i,2)}, {vr(vX+w*16+i,2)}, {vr(vF+2*w,2)}, {vr(vAcc+i,2)} op_sel_hi:[1,0,1]")
    STAMP(3)
    if enc == 9003: A("s_memrealtime s[98:99]")
    if cut == 2: A("s_branch L_comb")
    if cut == 3: A("s_branch L_fin")
    A("s_cmp_lg_u32 s91, 0\ns_cbranch_scc1 L_have")
    for i in range(4):
        A(f"buffer_store_dwordx4 {vr(vAcc+4*i)}, v{vVoff}, {sWs}, s63 offen offset:{i*1024} sc1")
    A(f"buffer_store_dwordx2 v[{vMx}:{vMx+1}], v{vTmp+1}, {sWs}, s89 offen sc1")
    poll(False)
    A("s_waitcnt vmcnt(0)")
    STAMP(4)
    pollres('s90')
    if force == 2: A("s_mov_b32 s90, 0\ns_cmp_lg_u32 s90, 0")
    if force == 3: A("s_bitcmp1_b32 s40, 1\ns_cselect_b32 s90, 0, s90\ns_cmp_lg_u32 s90, 0")
    A("s_cbranch_scc0 L_nos2")
    mbox_load('s57', 's58')
    A(f"L_nos2:\nv_mov_b32 v{vPoll}, s90\nds_write_b32 v7, v{vPoll} offset:16")
    A("s_waitcnt lgkmcnt(0)\ns_barrier")
    A("ds_read_b128 v[76:79], v8 offset:16\ns_waitcnt lgkmcnt(0)")
    A("v_or3_b32 v76, v76, v77, v78\nv_or_b32 v76, v76, v79\nv_readfirstlane_b32 s91, v76")
    A("s_cmp_lg_u32 s91, 0\ns_cbranch_scc1 L_have")
    A("s_cmp_lg_u32 s40, 0\ns_cbranch_scc1 L_noatomic")
    A(f"v_mov_b32 v{vPoll}, s60\nv_mov_b32 v76, s95")
    A("s_mov_b64 exec, 1")
    A(f"buffer_store_dword v76, v{vTmp}, {sWs}, s93 offen sc1")
    A(f"buffer_atomic_add v{vPoll}, v{vTmp}, {sDbg}, s61 offen sc0")
    A("s_waitcnt vmcnt(0)")
    A(f"ds_write_b32 v8, v{vPoll} offset:32")
    A("s_waitcnt lgkmcnt(0)")
    A("s_mov_b64 exec, -1")
    A("L_noatomic:\ns_barrier")
    A(f"ds_read_b32 v{vPoll}, v8 offset:32\ns_waitcnt lgkmcnt(0)")
    STAMP(5)
    cntres('s91')
    A("s_cbranch_scc0 L_fin")
    A("L_have:")
    A("s_cmp_lg_u32 s90, 0\ns_cbranch_scc1 L_wait")
    mbox_load('s57', 's58')
    A("L_wait:\ns_waitcnt vmcnt(0)")
    A("L_comb:\ns_nop 1")
    A(f"v_max_f32 v12, v{vMx}, v{vY+16}")
    A(f"v_sub_f32 v14, v{vMx}, v12\nv_sub_f32 v16, v{vY+16}, v12")
    A("v_exp_f32 v14, v14\nv_exp_f32 v16, v16")
    A(f"v_mul_f32 v12, v14, v{vLs}\nv_mul_f32 v13, v16, v{vY+17}\nv_add_f32 v12, v12, v13")
    A("v_rcp_f32 v12, v12")
    A("v_mul_f32 v14, v14, v12\nv_mul_f32 v16, v16, v12")
    for i in range(0, 16, 2): A(f"v_pk_mul_f32 {vr(vAcc+i,2)}, {vr(vAcc+i,2)}, v[14:15] op_sel_hi:[1,0]")
    for i in range(0, 16, 2): A(f"v_pk_mul_f32 {vr(vY+i,2)}, {vr(vY+i,2)}, v[16:17] op_sel_hi:[1,0]")
    for i in range(0, 16, 2): A(f"v_pk_add_f32 {vr(vAcc+i,2)}, {vr(vAcc+i,2)}, {vr(vY+i,2)}")
    for r in range(4):
        A(f"v_cvt_pk_bf16_f32 v{80+2*r}, v{vAcc+0*4+r}, v{vAcc+1*4+r}")
        A(f"v_cvt_pk_bf16_f32 v{81+2*r}, v{vAcc+2*4+r}, v{vAcc+3*4+r}")
        A(f"ds_write_b64 v5, v[{80+2*r}:{81+2*r}] offset:{r*16}")
    A("s_waitcnt lgkmcnt(0)")
    A("ds_read_b128 v[88:91], v6\nds_read_b128 v[92:95], v6 offset:1088")
    A("s_waitcnt lgkmcnt(1)")
    A(f"buffer_store_dwordx4 v[88:91], v{vVoff}, {sOut}, s62 offen {oflags}")
    A("s_waitcnt lgkmcnt(0)")
    A(f"buffer_store_dwordx4 v[92:95], v{vVoff}, {sOut}, s62 offen offset:1024 {oflags}")
    if stamp: A("s_waitcnt vmcnt(0)")
    STAMP(6)
    A("L_fin:")
    if enc == 9004: A("s_waitcnt vmcnt(0)\ns_memrealtime s[98:99]")
    if gpad:
        A("s_waitcnt vmcnt(0) lgkmcnt(0)\ns_not_b32 s88, s84\nv_mov_b32 v100, s88\nv_mov_b32 v102, s84\nv_mov_b32 v110, 0\ns_mov_b64 exec, 1")
        A("buffer_atomic_umax v100, v110, s[36:39], 0 offen\nbuffer_atomic_umax v102, v110, s[36:39], 0 offen offset:4\ns_waitcnt vmcnt(0)")
        A(f"L_pad0:\ns_memrealtime s[86:87]\ns_waitcnt lgkmcnt(0)\ns_sub_u32 s86, s86, s84\ns_cmp_lt_u32 s86, {(padto-25)*100}\ns_cbranch_scc1 L_pad0")
        A("buffer_load_dword v101, v110, s[36:39], 0 offen sc1\ns_waitcnt vmcnt(0)\nv_readfirstlane_b32 s84, v101\ns_nop 3\ns_not_b32 s84, s84")
    if enc >= 0:
        A(f"s_waitcnt lgkmcnt(0)\ns_sub_u32 s98, s98, {'s96' if enca >= 0 else 's84'}\ns_add_u32 s84, s84, s98")
    if padto:
        A(f"s_waitcnt vmcnt(0)\nL_pad:\ns_memrealtime s[86:87]\ns_waitcnt lgkmcnt(0)\ns_sub_u32 s86, s86, s84\ns_cmp_lt_u32 s86, {padto*100}\ns_cbranch_scc1 L_pad")
    if stamp:
        A("s_waitcnt lgkmcnt(0)")
        A("s_lshl_b32 s46, s2, 2\ns_add_u32 s46, s46, s40\ns_lshl_b32 s46, s46, 6\ns_add_u32 s46, s46, 0x600000")
        for i in range(7): A(f"v_mov_b32 v{100+i}, s{64+2*i}")
        A("s_getreg_b32 s47, hwreg(HW_REG_XCC_ID)\nv_mov_b32 v107, s47")
        A("s_sub_u32 s82, s82, s80\nv_mov_b32 v108, s82\nv_mov_b32 v109, s79")
        A("v_mov_b32 v110, 0\ns_mov_b64 exec, 1")
        A("buffer_store_dwordx4 v[100:103], v110, s[32:35], s46 offen")
        A("buffer_store_dwordx4 v[104:107], v110, s[32:35], s46 offen offset:16")
        A("buffer_store_dwordx2 v[108:109], v110, s[32:35], s46 offen offset:32")
    A("L_end:\ns_endpgm")
    body, added = fix(o)
    head = HEADER + f"; @launch grid=({NWG},1,1) block=({NW*64},1,1) lds={lds}\n" + \
        f'.amdgcn_target "amdgcn-amd-amdhsa--gfx950"\n.text\n.globl {KN}\n.p2align 8\n.type {KN},@function\n{KN}:\n'
    tail = f"""
.section .rodata,"a"
.p2align 6
.amdhsa_kernel {KN}
  .amdhsa_next_free_vgpr {nv + 256}
  .amdhsa_next_free_sgpr 100
  .amdhsa_accum_offset {nv}
  .amdhsa_group_segment_fixed_size 0
  .amdhsa_kernarg_size 48
  .amdhsa_user_sgpr_count 2
  .amdhsa_user_sgpr_kernarg_segment_ptr 1
  .amdhsa_system_sgpr_workgroup_id_x 1
.end_amdhsa_kernel
"""
    open(path, 'w').write(head + "\n".join(body) + tail)
    print(f"{path}: {len(body)} lines, {added} nop states added", file=sys.stderr)
if __name__ == "__main__":
    kw = {}
    for a in sys.argv[2:]:
        k, v = a.split('=')
        kw[k] = int(v) if (v.lstrip('-').isdigit() and k not in ('wk','wv','boost')) else v.replace('+', ' ')
    gen(sys.argv[1], **kw)
```

```python
import sys, struct, math
from hz import fix
KN = "standalone__gqa_softmax__sampling_kernel"
HEADER = """; Kernarg layout for this problem (48 bytes, ptrs only, base s[0:1]):
"""
def f2u(f): return struct.unpack('<I', struct.pack('<f', f))[0]

def gen(path, W=5, flags='nt', pairmap='adj', stamp=0, touch=0, NT=32, pre=0, padto=0, oflags='', gpad=0, wk='', wv='', w2=0, x2=0, RING=4, cut=0, nocomp=0, force=0, late=0, clrslot=-1, noclr=0, notok=0, nospec=0, P1=6, qflags='', fflags='sc1', w1=0, x1=0, y1=0, pf=0, enc=-1, w0=0, x0=0, qpos=3, boost='', pa=8, ra=3, pb=8, rb=7, enca=-1, fb=0, t1=10, t2=14, fbfl='nt', fbst='', clean=1, oddadd=0):
    NW = 4; NWG = 256
    o = []; A = o.append
    vm = []; st = {'done': 0}
    def VM(text, tag): A(text); vm.append(tag)
    def WAITN(n):
        A(f"s_waitcnt vmcnt({n})"); st['done'] = max(st['done'], len(vm) - n)
    def REQ(tag):
        idx = len(vm) - 1 - vm[::-1].index(tag)
        if idx >= st['done']: WAITN(len(vm) - idx - 1)
    LDS_ST = 65536; LDS_BN = 65536 + 2048
    LDS_FL = LDS_BN + 4 * 2176
    LDS_Q = 77824
    lds = LDS_Q + 8192
    SLOT = 5120; WS_A = 0x500000; WS_FB = 0x800000; TOKEN = 0x13579bdf
    vKld = [1, 2, 3, 4]; vKrd = [5, 6, 7, 8]; vVoff = 9; vQoff = 10
    vMp, vT0, vT1 = 12, 13, 14
    vM = [15, 11]; vA = [16, 18]; vL = [20, 21]; vTmp = 22; vFB = 240
    vAl = 24
    vQ = 56; vVT = 56
    vKF = 88; vS = 120; vO = 88
    vP = 152
    vV = 160
    nv = 160 + 16 * RING
    if fb: nv = 244
    S = lambda b, h, T, r=0: vS + b * 16 + (h * 2 + T) * 4 + r
    P = lambda h, u=0: vP + h * 4 + u
    aP = lambda t, h, u=0: t * 8 + h * 4 + u
    VT = lambda j, u=0: vVT + j * 4 + u
    O = lambda h, j, r=0: vO + (h * 8 + j) * 4 + r
    Vb = lambda n, i, w=0: vV + (n % RING) * 16 + i * 4 + w
    KF = lambda T, s: vKF + (T * 4 + s) * 4
    Q = lambda h, s: vQ + (h * 4 + s) * 4
    vr = lambda r, n=4: f"v[{r}:{r+n-1}]"
    ar = lambda r, n=4: f"a[{r}:{r+n-1}]"
    sK, sV, sQ, sOut, sWs, sDbg = 's[16:19]', 's[20:23]', 's[24:27]', 's[28:31]', 's[32:35]', 's[36:39]'
    def STAMP(i):
        if stamp: A(f"s_memrealtime s[{64+2*i}:{65+2*i}]")
    A(f"s_cmp_ge_u32 s2, {NWG}\ns_cbranch_scc1 L_end")
    A("s_load_dwordx8 s[4:11], s[0:1], 0\ns_load_dwordx4 s[12:15], s[0:1], 32")
    STAMP(0)
    if padto: A("s_memrealtime s[84:85]")
    if stamp:
        A("s_memtime s[80:81]\ns_mov_b32 s83, 0")
        for i in range(1, 8): A(f"s_mov_b64 s[{64+2*i}:{65+2*i}], 0")
    if late:
        A(f"s_bitcmp1_b32 s2, 0\ns_cbranch_scc0 L_go\ns_memrealtime s[84:85]\ns_waitcnt lgkmcnt(0)\nL_late:\ns_memrealtime s[86:87]\ns_waitcnt lgkmcnt(0)\ns_sub_u32 s86, s86, s84\ns_cmp_lt_u32 s86, {late*100}\ns_cbranch_scc1 L_late\nL_go:")
    if pf:
        A("s_getpc_b64 s[96:97]\nL_pc:")
        A(f"s_lshr_b32 s46, s2, 3\ns_lshl_b32 s46, s46, 11")
        A(f"v_lshl_add_u32 v{vV+4}, v0, 3, s46")
        A(f"v_min_u32 v{vV+4}, L_end - L_pc - 4, v{vV+4}")
        VM(f"global_load_dword v{vV+5}, v{vV+4}, s[96:97]", 'x')
    A("v_lshrrev_b32 v1, 6, v0\nv_and_b32 v0, 63, v0")
    A("v_and_b32 v11, 15, v0           ; p / m / n")
    A("v_readfirstlane_b32 s40, v1")
    A("v_lshrrev_b32 v12, 4, v0        ; q / g")
    A("v_lshlrev_b32 v13, 2, v12       ; 4q")
    A("v_xor_b32 v13, v13, v11         ; p ^ 4q")
    A("v_lshlrev_b32 v14, 8, v12       ; q*256")
    for i in range(4):
        A(f"v_xor_b32 v15, {i}, v13\nv_lshl_add_u32 v{vKld[i]}, v15, 4, v14")
    if pairmap == 'adj':
        A("s_lshr_b32 s41, s2, 1\ns_and_b32 s42, s2, 1")
    else:
        A("s_and_b32 s41, s2, 127\ns_lshr_b32 s42, s2, 7")
    A("s_lshl_b32 s43, s42, 2\ns_add_u32 s43, s43, s40      ; widx")
    A("s_lshl_b32 s44, s43, 12      ; K soffset\ns_mov_b32 s45, s44")
    A("s_lshl_b32 s46, s41, 21")
    A("s_lshl_b32 s47, s40, 14")
    A("s_mov_b32 s18, 0x200000\ns_mov_b32 s19, 0x20000")
    A("s_mov_b32 m0, s47")
    A("s_mov_b32 s26, 0x100000\ns_mov_b32 s27, 0x20000")
    A("s_lshl_b32 s51, s41, 13")
    A("s_lshl_b32 s52, s40, 11\ns_add_u32 s62, s52, s51")
    A(f"s_add_u32 s52, s52, {LDS_Q}")
    A("s_and_b32 s54, s40, 1\ns_lshl_b32 s53, s54, 5")
    A(f"v_xor_b32 v{vV+6}, s53, v{vKld[0]}\nv_xor_b32 v{vV+7}, s53, v{vKld[1]}")
    if enc == 9000: A("s_memrealtime s[98:99]")
    A("s_waitcnt lgkmcnt(0)")
    if enc == 9001: A("s_memrealtime s[98:99]")
    A("s_add_u32 s16, s6, s46\ns_addc_u32 s17, s7, 0")
    NS = NT * 8
    wk = str(wk) or str(W); wv = str(wv) or str(W)
    win = [int(wk[k % len(wk)], 16) for k in range(NS)] + [int(wv[k % len(wv)], 16) for k in range(NS)]
    if w2:
        for k in range(2 * NS - x2, 2 * NS): win[k] = w2
    if w0:
        for k in range(x0): win[k] = w0
    if w1:
        for k in range(NS - x1, NS + y1): win[k] = w1
    skip = {}
    if boost:
        for k in range(32, 2 * NS - x2):
            if k % pa == ra: skip[k] = 'a'
            elif k % pb == rb: skip[k] = 'b'
        for k in skip: win[k] += 1
    win += [win[-1]] * 64
    def ready(idx):
        k = idx + 1
        while k - win[k] < idx: k += 1
        return k
    RK = [ready(4 * n + 3) for n in range(2 * NT)]
    for n in range(1, 2 * NT): RK[n] = max(RK[n], RK[n - 1] + 4)
    RV = [ready(NS + 4 * n + 3) for n in range(2 * NT)]
    RV[0] = max(RV[0], RK[-1] + 4)
    for n in range(1, 2 * NT): RV[n] = max(RV[n], min(RV[n - 1] + 4, NS + 4 * n + 4 * RING - 4 - 1))
    work = {}
    def at(slot, fn): work.setdefault(slot, []).append(fn)
    def qload():
        A("s_mov_b32 s24, s4\ns_mov_b32 s25, s5\ns_mov_b32 m0, s52")
        VM(f"buffer_load_dwordx4 v{vV+6}, {sQ}, s62 offen {qflags} lds", 'q')
        VM(f"buffer_load_dwordx4 v{vV+7}, {sQ}, s62 offen offset:1024 {qflags} lds", 'q')
        if qpos % 4 != 3: A(f"s_add_u32 m0, s47, {((qpos//4)%4)*4096}")
    at(qpos, qload)
    def setup2():
        A("v_and_b32 v13, 3, v11\nv_lshlrev_b32 v13, 2, v13\nv_lshrrev_b32 v14, 2, v11\nv_add_u32 v13, v13, v14    ; rho")
        A(f"v_xor_b32 v{vV+8}, v12, v13\nv_lshlrev_b32 v{vV+8}, 4, v{vV+8}\nv_lshl_add_u32 v{vV+8}, v11, 8, v{vV+8}")
        A(f"v_add_u32 v{vV+8}, {LDS_Q}, v{vV+8}")
        for s in range(1, 4): A(f"v_xor_b32 v{vV+8+s}, {64*s}, v{vV+8}")
        A("v_lshlrev_b32 v13, 8, v13\nv_add_u32 v13, s47, v13")
        A("v_xor_b32 v14, v12, v11      ; g ^ m")
        for s in range(4):
            A(f"v_xor_b32 v15, {4*s}, v14\nv_lshl_add_u32 v{vKrd[s]}, v15, 4, v13")
        c = math.log2(math.e) / math.sqrt(128.0)
        A(f"s_mov_b32 s48, 0x{f2u(c):08x}     ; log2(e)/sqrt(128)")
        A(f"v_mov_b32 v{vMp}, 0xff800000")
        A(f"v_mov_b32 v{vL[0]}, 0\nv_mov_b32 v{vL[1]}, 0")
        if enc == 9002: A("s_memrealtime s[98:99]")
    at(win[0] - 1, setup2)
    def qread():
        REQ('q')
        A("s_barrier")
        for h in range(2):
            for s in range(4): A(f"ds_read_b128 {vr(Q(h,s))}, v{vV+8+s} offset:{h*4096}")
    at(RK[0], qread)
    px = 1 if pairmap == 'adj' else 128
    def setup3():
        A("s_add_u32 s20, s8, s46\ns_addc_u32 s21, s9, 0\ns_mov_b32 s22, 0x200000\ns_mov_b32 s23, 0x20000")
        A(f"v_lshlrev_b32 v{vVoff}, 4, v0")
        A("s_mov_b32 s28, s10\ns_mov_b32 s29, s11\ns_mov_b32 s30, 0x100000\ns_mov_b32 s31, 0x20000")
        A("s_mov_b32 s32, s14\ns_mov_b32 s33, s15\ns_mov_b32 s34, 0x1000000\ns_mov_b32 s35, 0x20000")
        A("s_mov_b32 s36, s12\ns_mov_b32 s37, s13\ns_mov_b32 s38, 256\ns_mov_b32 s39, 0x20000")
        A("s_mov_b32 s49, 0x05040100\ns_mov_b32 s50, 0x07060302")
        if boost:
            tab = sum(int(boost[c]) << (2 * c) for c in range(4))
            A("s_getreg_b32 s88, hwreg(HW_REG_XCC_ID, 0, 1)\ns_lshl_b32 s88, s88, 2")
            A("s_lshr_b32 s90, s2, 3\ns_xor_b32 s90, s90, s2\ns_and_b32 s90, s90, 1\ns_lshl_b32 s90, s90, 1\ns_add_u32 s88, s88, s90")
            A(f"s_lshr_b32 s88, {tab}, s88\ns_and_b32 s88, s88, 3")
            A("s_mov_b32 s90, s88\ns_mov_b32 s91, 0\ns_mov_b64 vcc, s[90:91]")
    def setup4():
        A("s_lshl_b32 s55, s2, 2\ns_add_u32 s55, s55, s40")
        A(f"s_xor_b32 s56, s55, {px*4}")
        A(f"s_mul_i32 s63, s55, {SLOT}")
        A(f"s_mul_i32 s57, s56, {SLOT}")
        A(f"s_add_u32 s58, s57, 4096\ns_add_u32 s89, s63, 4096")
        if fb: A("s_and_b32 s59, s41, 3\ns_lshl_b32 s59, s59, 3\ns_lshl_b32 s60, 1, s59\ns_and_b32 s61, s41, 0x7c")
        else: A("s_and_b32 s59, s41, 1\ns_lshl_b32 s59, s59, 4\ns_lshl_b32 s60, 1, s59\ns_lshr_b32 s61, s41, 1\ns_lshl_b32 s61, s61, 2")
        if fb:
            A("s_and_b32 s42, s2, 7\ns_lshl_b32 s42, s42, 4\ns_lshr_b32 s43, s2, 4\ns_add_u32 s42, s42, s43\ns_add_u32 s42, s42, 128")
            A("s_lshr_b32 s43, s2, 3\ns_and_b32 s43, s43, 1\ns_or_b32 s43, s43, s40\ns_cmp_eq_u32 s43, 0\ns_cselect_b32 s42, s42, 0x1000")
            A(f"v_lshlrev_b32 v{vFB}, 1, v0")
            if oddadd: A(f"s_getreg_b32 s43, hwreg(HW_REG_XCC_ID, 0, 1)\ns_mul_i32 s43, s43, {oddadd}")
        A(f"v_mov_b32 v{vTmp}, 0\nv_lshlrev_b32 v{vTmp+1}, 3, v0")
        A(f"s_lshl_b32 s92, s56, 7\ns_add_u32 s92, s92, {WS_A}")
        A(f"s_lshl_b32 s93, s55, 7\ns_add_u32 s93, s93, {WS_A}")
        VM(f"buffer_load_dword v{vV}, v{vTmp}, {sWs}, s92 offen {fflags}", 'f0')
        VM(f"buffer_load_dword v{vV+1}, v{vTmp}, {sWs}, s93 offen {fflags}", 'f0')
    def touches():
        VM(f"buffer_load_dword v{vV+2}, v{vTmp}, {sV}, s45 offen {flags}", 'x')
        VM(f"buffer_load_dword v{vV+2}, v{vTmp}, {sOut}, s62 offen nt", 'x')
        VM(f"buffer_load_dword v{vV+2}, v{vTmp}, {sWs}, s89 offen offset:768 nt", 'x')
    at(RK[0] + 2, setup3)
    at(RK[0] + 3, setup4)
    if touch: at(touch, touches)
    vPoll = vQoff
    if fb:
        def fb_io(c):
            def f():
                A(f"v_mov_b32 v{vFB+1}, {c}")
                A("s_mov_b64 exec, 1")
                VM(f"buffer_store_byte v{vFB+1}, v{vTmp}, {sDbg}, s42 offen {fbst}", 'fbs')
                A("s_mov_b64 exec, -1")
                VM(f"buffer_load_ushort v{vQoff}, v{vFB}, {sDbg}, 0 offen offset:128 {fbfl}", 'fbl')
            return f
        def fb_use(c):
            def f():
                REQ('fbl')
                A(f"v_and_b32 v{vFB+1}, 0xff, v{vQoff}\nv_lshrrev_b32 v{vQoff}, 8, v{vQoff}")
                A(f"v_cmp_le_u32 vcc, {c}, v{vFB+1}\nv_cmp_le_u32 s[90:91], {c}, v{vQoff}")
                A("s_bcnt1_i32_b64 s88, vcc\ns_bcnt1_i32_b64 s90, s[90:91]\ns_add_u32 s90, s90, s88")
                if oddadd: A("s_add_u32 s90, s90, s43")
                if stamp: A(f"s_lshl_b32 s83, s83, 5\ns_or_b32 s83, s83, s90")
                A(f"s_cmp_ge_u32 s90, {t2}\ns_cselect_b32 s88, 2, 0")
                A(f"s_cmp_ge_u32 s90, {t1}\ns_cselect_b64 vcc, -1, 0")
            return f
        c = 1
        for k in range(fb + 2, 2 * NS - x2 - 8, fb):
            at(k, fb_io(c)); at(k + 8, fb_use(c)); c += 1
    def flag0():
        REQ('f0')
        A(f"v_readfirstlane_b32 s94, v{vV}\nv_readfirstlane_b32 s95, v{vV+1}\ns_nop 1\ns_add_u32 s95, s95, 1")
    at(RK[0] + 3 + 16, flag0)
    def poll(track):
        t = f"buffer_load_dword v{vPoll}, v{vTmp}, {sWs}, s92 offen sc1"
        if track: VM(t, 'poll')
        else: A(t)
    def pollres(dst):
        A(f"v_readfirstlane_b32 {dst}, v{vPoll}")
        A(f"s_xor_b32 {dst}, {dst}, s94")
    def cntres(dst):
        A(f"v_readfirstlane_b32 {dst}, v{vPoll}")
        A(f"s_lshr_b32 {dst}, {dst}, s59\ns_and_b32 {dst}, {dst}, 0xff")
    if cut != 1: at(2 * NS - P1, lambda: poll(True))
    def kread(t, T):
        def f():
            n = 2 * t + T
            REQ(('ld', 4 * n + 3))
            for s in range(4):
                A(f"ds_read_b128 {vr(KF(T,s))}, v{vKrd[s]} offset:{(n%4)*4096}")
        return f
    def kmma(t, T, extra=None):
        def f():
            A("s_waitcnt lgkmcnt(0)")
            b = t & 1; k = 0
            for s in range(4):
                for h in range(2):
                    cin = '0' if s == 0 else vr(S(b, h, T))
                    A(f"v_mfma_f32_16x16x32_bf16 {vr(S(b,h,T))}, {vr(KF(T,s))}, {vr(Q(h,s))}, {cin}")
                    if extra and k < len(extra) and (s * 2 + h) % 2 == 1: A(extra[k]); k += 1
        return f
    def smax(t):
        def f():
            b = t & 1; tt = [vT0, vT1]
            for h in range(2): A(f"v_max3_f32 v{tt[h]}, v{S(b,h,0,0)}, v{S(b,h,0,1)}, v{S(b,h,0,2)}")
            for h in range(2): A(f"v_max3_f32 v{tt[h]}, v{tt[h]}, v{S(b,h,0,3)}, v{S(b,h,1,0)}")
            for h in range(2): A(f"v_max3_f32 v{tt[h]}, v{tt[h]}, v{S(b,h,1,1)}, v{S(b,h,1,2)}")
            for h in range(2): A(f"v_max_f32 v{tt[h]}, v{tt[h]}, v{S(b,h,1,3)}")
            A(f"v_permlane32_swap_b32 v{vT0}, v{vT1}")
            A(f"v_max_f32 v{vT0}, v{vT0}, v{vT1}")
            A(f"v_mov_b32 v{vT1}, v{vT0}")
            A(f"v_permlane16_swap_b32 v{vT0}, v{vT1}")
            A(f"v_max_f32 v{vT0}, v{vT0}, v{vT1}")
            A(f"v_mul_f32 v{vT0}, s48, v{vT0}")
            A(f"v_max_f32 v{vM[0]}, v{vMp}, v{vT0}")
            A(f"v_sub_f32 v{vT1}, v{vMp}, v{vM[0]}")
            A(f"v_exp_f32 v{vAl+t}, v{vT1}")
            A(f"v_mov_b32 v{vMp}, v{vM[0]}")
            A(f"v_mov_b32 v{vM[1]}, v{vM[0]}")
            A(f"v_mov_b32 v{vA[0]}, v{vAl+t}")
            A(f"v_mov_b32 v{vA[1]}, v{vAl+t}")
            A(f"v_permlane32_swap_b32 v{vM[0]}, v{vM[1]}")
            A(f"v_permlane32_swap_b32 v{vA[0]}, v{vA[1]}")
        return f
    def sregs(b): return [S(b, h, T, r) for h in range(2) for T in range(2) for r in range(4)]
    def sfma(t):
        def f():
            b = t & 1
            for i, r in enumerate(sregs(b)): A(f"v_fma_f32 v{r}, v{r}, s48, -v{vM[i>>3]}")
            for r in sregs(b)[:4]: A(f"v_exp_f32 v{r}, v{r}")
        return f
    def sexp(t, lo, hi):
        def f():
            for r in sregs(t & 1)[lo:hi]: A(f"v_exp_f32 v{r}, v{r}")
        return f
    def spack(t):
        def f():
            b = t & 1
            for h in range(2):
                for u in range(4):
                    T, x = u >> 1, u & 1
                    A(f"v_cvt_pk_bf16_f32 v{P(h,u)}, v{S(b,h,T,2*x)}, v{S(b,h,T,2*x+1)}")
            for h in range(2):
                for u in range(4): A(f"v_accvgpr_write_b32 a{aP(t,h,u)}, v{P(h,u)}")
        return f
    def lsum(t):
        def f():
            b = t & 1
            for h in range(2): A(f"v_fma_f32 v{vL[h]}, v{vL[h]}, v{vA[h]}, v{S(b,h,0,0)}")
            for idx in range(1, 8):
                for h in range(2): A(f"v_add_f32 v{vL[h]}, v{vL[h]}, v{S(b,h,idx>>2,idx&3)}")
        return f
    for t in range(NT):
        a, b_ = RK[2 * t], RK[2 * t + 1]
        assert b_ >= a + 2
        if t > 0: assert RK[2 * t - 1] + 3 < a + 1 < RK[2 * t - 1] + 6 or (RK[2*t-1] + 3, a + 1)
        assert (a + 1 < 4 * (2 * t + 4) or 2 * t + 4 >= 2 * NT) and (b_ + 1 < 4 * (2 * t + 1 + 4) or 2 * t + 5 >= 2 * NT)
        at(a, kread(t, 0))
        ex = [f"v_exp_f32 v{r}, v{r}" for r in sregs((t - 1) & 1)[12:16]] if t > 0 else None
        at(a + 1, kmma(t, 0, ex))
        at(b_, kread(t, 1))
        at(b_ + 1, kmma(t, 1))
        at(b_ + 2, smax(t))
        at(b_ + 3, sfma(t))
        at(b_ + 4, sexp(t, 4, 12))
        nxt = RK[2 * t + 2] + 1 if t < NT - 1 else b_ + 5
        assert nxt > b_ + 3
        if t == NT - 1: at(b_ + 5, sexp(t, 12, 16))
        at(max(nxt, b_ + 4) + 1, spack(t))
        at(max(nxt, b_ + 4) + 2, lsum(t))
        if t < NT - 1: assert max(nxt, b_ + 4) + 2 <= RK[2 * t + 3] + 1
    kdone = RK[2 * NT - 1] + 7
    def perm(t, j, u):
        T, x, w = u >> 1, u & 1, j >> 1
        n = 2 * t + T
        REQ(('ld', NS + 4 * n + 2 * x + 1))
        A(f"v_perm_b32 v{VT(j,u)}, v{Vb(n,2*x+1,w)}, v{Vb(n,2*x,w)}, {'s49' if j%2==0 else 's50'}")
    def v1(t, i):
        def f():
            if t > 0:
                if i == 0:
                    A(f"v_mov_b32 v{vA[0]}, v{vAl+t}\nv_mov_b32 v{vA[1]}, v{vAl+t}")
                    A(f"v_permlane32_swap_b32 v{vA[0]}, v{vA[1]}")
                for j in (2 * i, 2 * i + 1):
                    for h in range(2):
                        for r in (0, 2):
                            A(f"v_pk_mul_f32 {vr(O(h,j,r),2)}, {vr(O(h,j,r),2)}, {vr(vA[h],2)} op_sel_hi:[1,0]")
            for j in (2 * i, 2 * i + 1):
                for u in (0, 1): perm(t, j, u)
        return f
    def pv(t, j):
        for h in range(2):
            cin = '0' if t == 0 else vr(O(h, j))
            A(f"v_mfma_f32_16x16x32_bf16 {vr(O(h,j))}, {vr(VT(j))}, {ar(aP(t,h))}, {cin}")
    def v2(t, i):
        def f():
            for j in (2 * i, 2 * i + 1):
                for u in (2, 3): perm(t, j, u)
            for j in (2 * i, 2 * i + 1): pv(t, j)
        return f
    vY = 24
    def mbox_load(so_d, so_s, track=False):
        E = (lambda x: VM(x, 'y')) if track else A
        E(f"buffer_load_dwordx2 v[{vY+16}:{vY+17}], v{vTmp+1}, {sWs}, {so_s} offen sc1")
        for i in range(4): E(f"buffer_load_dwordx4 {vr(vY+4*i)}, v{vVoff}, {sWs}, {so_d} offen offset:{i*1024} sc1")
    def owrite(j):
        for h in range(2): A(f"ds_write_b128 v{1 if j < 4 else 2}, {vr(O(h,j))} offset:{(h*8+j)*1024}")
    def v2last(t):
        def f():
            for j in range(8): perm(t, j, 2)
            perm(t, 0, 3); perm(t, 1, 3)
            if cut != 1:
                REQ('poll')
                pollres('s90')
                if force in (1, 2, 3, 5): A("s_mov_b32 s90, 0\ns_cmp_lg_u32 s90, 0")
                if force == 4: A("s_bitcmp1_b32 s40, 0\ns_cselect_b32 s90, 0, s90\ns_cmp_lg_u32 s90, 0")
                A("s_cbranch_scc0 L_nos1")
                mbox_load('s57', 's58')
                A(f"L_nos1:")
            for j in range(8):
                pv(t, j)
                if j + 2 < 8: perm(t, j + 2, 3)
                if j >= 3 and cut != 1: owrite(j - 3)
            if cut != 1:
                for j in range(5, 8): owrite(j)
        return f
    def stats():
        A(f"v_permlane32_swap_b32 v{vL[0]}, v{vL[1]}")
        A(f"v_add_f32 v{vT0}, v{vL[0]}, v{vL[1]}")
        A(f"v_mov_b32 v{vT1}, v{vT0}")
        A(f"v_permlane16_swap_b32 v{vT0}, v{vT1}")
        A(f"v_add_f32 v{vT0}, v{vT0}, v{vT1}")
        A(f"s_lshl_b32 s46, s40, 9\ns_add_u32 s46, s46, {LDS_ST}")
        A(f"v_lshl_add_u32 v{vT1}, v0, 3, s46")
        A(f"ds_write_b64 v{vT1}, v[{vMp}:{vMp+1}]")
        A(f"v_add_u32 v1, s47, v{vVoff}")
        A(f"v_xor_b32 v2, 0x80, v1")
        A("s_lshr_b32 s53, s40, 1       ; h\ns_and_b32 s54, s40, 1")
        A("v_and_b32 v6, 7, v0          ; q'\nv_bfe_u32 v7, v0, 3, 1      ; jh\nv_lshrrev_b32 v8, 4, v0     ; g")
        A("s_lshl_b32 s46, s54, 3\nv_add_u32 v5, s46, v6       ; q")
        A(f"s_lshl_b32 s46, s53, 8\ns_add_u32 s46, s46, {LDS_ST}")
        A(f"v_lshl_add_u32 v3, v5, 3, s46")
        A("v_lshlrev_b32 v4, 3, v7\nv_xor_b32 v4, v4, v5\nv_lshlrev_b32 v4, 4, v4      ; (q ^ 8jh)*16")
        A("v_lshl_add_u32 v4, v8, 8, v4\nv_lshl_add_u32 v4, v7, 12, v4")
        A("s_lshl_b32 s46, s53, 13\nv_add_u32 v4, s46, v4")
        A(f"s_mul_i32 s46, s40, 2176\ns_add_u32 s46, s46, {LDS_BN}")
        A("v_mul_u32_u24 v5, 272, v6\nv_lshl_add_u32 v5, v8, 6, v5\nv_lshl_add_u32 v5, v7, 3, v5\nv_add_u32 v5, s46, v5")
        A("v_mul_u32_u24 v6, 272, v8\nv_and_b32 v7, 15, v0\nv_lshl_add_u32 v6, v7, 4, v6\nv_add_u32 v6, s46, v6")
        A(f"s_lshl_b32 s46, s40, 2\ns_add_u32 s46, s46, {LDS_FL}\nv_mov_b32 v7, s46\nv_mov_b32 v8, {LDS_FL}")
        A(f"ds_write_b32 v7, v{vTmp}")
    at(RV[3] + 1, stats)
    assert RV[0] > RK[2 * NT - 1] + 1
    prev = 0
    for t in range(NT):
        a = max(RV[2 * t], prev + 1)
        for i in range(4): at(a + i, v1(t, i))
        b_ = max(RV[2 * t + 1], a + 4)
        if t == 0: assert b_ > kdone, (b_, kdone)
        if t == 1: assert a > kdone
        assert a + 3 < NS + 4 * (2 * t + RING) and b_ + 3 < NS + 4 * (2 * t + 1 + RING), (t, a, b_)
        if t < NT - 1:
            for i in range(4): at(b_ + i, v2(t, i))
        else: at(b_, v2last(t))
        prev = b_ + 3
    last = max(work)
    for k in range(last + 1):
        if k < 2 * NS:
            n, i = (k % NS) // 4, k % 4
            if k < NS:
                if i == 0 and n > 0:
                    A(f"s_add_u32 s44, s44, 0x8000\ns_add_u32 m0, s47, {(n%4)*4096}")
            elif i == 0 and n > 0: A("s_add_u32 s45, s45, 0x8000")
            if k >= win[k]: REQ(('ld', k - win[k]))
            if k in skip:
                idx = len(vm) - 1 - vm[::-1].index(('ld', k - win[k] + 1))
                if idx >= st['done']:
                    if skip[k] == 'a': A(f"s_cbranch_vccnz L_sk{k}")
                    else: A(f"s_bitcmp1_b32 s88, 1\ns_cbranch_scc1 L_sk{k}")
                    A(f"s_waitcnt vmcnt({len(vm) - idx - 1})\nL_sk{k}:")
            if k < NS: VM(f"buffer_load_dwordx4 v{vKld[i]}, {sK}, s44 offen offset:{i*1024} {flags} lds", ('ld', k))
            else: VM(f"buffer_load_dwordx4 {vr(Vb(n,i))}, v{vVoff}, {sV}, s45 offen offset:{i*1024} {flags}", ('ld', k))
        if stamp and k == NS: STAMP(1)
        if enc >= 0 and k == enc: A("s_memrealtime s[98:99]")
        if enca >= 0 and k == enca: A("s_memrealtime s[96:97]")
        for f in work.get(k, []):
            if nocomp == 1 and f not in (setup2, setup3, setup4, qload, stats): continue
            if nocomp == 2 and f not in (setup2, setup3, setup4, qload, stats) and k >= RV[0] + 8: continue
            if nocomp == 3 and f not in (setup2, setup3, setup4, qload, stats) and k < RV[0]: continue
            f()
    if nocomp: A("s_waitcnt vmcnt(0)")
    STAMP(2)
    if enc == 9999: A("s_memrealtime s[98:99]")
    if enca == 9999: A("s_memrealtime s[96:97]")
    if stamp: A("s_mov_b32 s79, s83\ns_memtime s[82:83]")
    if cut == 1: A("s_branch L_fin")
    A("s_waitcnt lgkmcnt(0)\ns_barrier")
    vSt = 42; vX = 160; vMx = 50; vLs = 51; vF = 52; vAcc = 60
    A("s_cmp_lg_u32 s90, 0\ns_cbranch_scc1 L_nob")
    poll(False)
    A("L_nob:")
    for w in range(4): A(f"ds_read_b64 v[{vSt+2*w}:{vSt+2*w+1}], v3 offset:{w*512}")
    for w in range(4):
        for i in range(4): A(f"ds_read_b128 {vr(vX+(w*4+i)*4)}, v4 offset:{w*16384+i*1024}")
    A("s_waitcnt lgkmcnt(15)")
    A(f"v_max3_f32 v{vMx}, v{vSt}, v{vSt+2}, v{vSt+4}")
    A(f"v_max_f32 v{vMx}, v{vMx}, v{vSt+6}")
    for w in range(4): A(f"v_sub_f32 v{vF+2*w}, v{vSt+2*w}, v{vMx}")
    for w in range(4): A(f"v_exp_f32 v{vF+2*w}, v{vF+2*w}")
    A(f"v_mul_f32 v{vLs}, v{vF}, v{vSt+1}")
    for w in range(1, 4): A(f"v_fmac_f32 v{vLs}, v{vF+2*w}, v{vSt+2*w+1}")
    A("s_waitcnt lgkmcnt(12)")
    for i in range(0, 16, 2): A(f"v_pk_mul_f32 {vr(vAcc+i,2)}, {vr(vX+i,2)}, {vr(vF,2)} op_sel_hi:[1,0]")
    for w in range(1, 4):
        A(f"s_waitcnt lgkmcnt({12-4*w})")
        for i in range(0, 16, 2): A(f"v_pk_fma_f32 {vr(vAcc+i,2)}, {vr(vX+w*16+i,2)}, {vr(vF+2*w,2)}, {vr(vAcc+i,2)} op_sel_hi:[1,0,1]")
    STAMP(3)
    if enc == 9003: A("s_memrealtime s[98:99]")
    if cut == 2: A("s_branch L_comb")
    if cut == 3: A("s_branch L_fin")
    A("s_cmp_lg_u32 s90, 0\ns_cbranch_scc1 L_wait")
    for i in range(4):
        A(f"buffer_store_dwordx4 {vr(vAcc+4*i)}, v{vVoff}, {sWs}, s63 offen offset:{i*1024} sc1")
    A(f"buffer_store_dwordx2 v[{vMx}:{vMx+1}], v{vTmp+1}, {sWs}, s89 offen sc1")
    A("s_waitcnt vmcnt(5)")
    pollres('s90')
    if force in (2, 5): A("s_mov_b32 s90, 0\ns_cmp_lg_u32 s90, 0")
    if force == 3: A("s_bitcmp1_b32 s40, 1\ns_cselect_b32 s90, 0, s90\ns_cmp_lg_u32 s90, 0")
    A("s_cbranch_scc1 L_load")
    poll(False)
    A(f"s_lshl_b32 s91, 2, s40\nv_mov_b32 v76, s95\nv_mov_b32 v77, s91")
    A("s_waitcnt vmcnt(0)")
    STAMP(4)
    pollres('s90')
    if force == 2: A("s_mov_b32 s90, 0\ns_cmp_lg_u32 s90, 0")
    if force == 3: A("s_bitcmp1_b32 s40, 1\ns_cselect_b32 s90, 0, s90\ns_cmp_lg_u32 s90, 0")
    A("s_cbranch_scc1 L_load")
    A("s_mov_b64 exec, 1")
    A(f"buffer_store_dword v76, v{vTmp}, {sWs}, s93 offen sc1")
    A("s_mov_b64 exec, -1")
    A("ds_write_b32 v7, v77")
    A("s_waitcnt lgkmcnt(0)\ns_barrier")
    A("ds_read_b128 v[76:79], v8\ns_waitcnt lgkmcnt(0)")
    A("v_or3_b32 v76, v76, v77, v78\nv_or_b32 v76, v76, v79\nv_readfirstlane_b32 s90, v76")
    A("s_ff1_i32_b32 s46, s90\ns_sub_u32 s46, s46, 1\ns_cmp_lg_u32 s46, s40\ns_cbranch_scc1 L_noatomic")
    A(f"s_or_b32 s90, s90, 1\ns_lshl_b32 s90, s90, s59\nv_mov_b32 v{vPoll}, s90")
    A("s_mov_b64 exec, 1")
    A(f"buffer_atomic_add v{vPoll}, v{vTmp}, {sDbg}, s61 offen sc0")
    A("s_waitcnt vmcnt(0)")
    A(f"ds_write_b32 v8, v{vPoll} offset:32")
    A("s_waitcnt lgkmcnt(0)")
    A("s_mov_b64 exec, -1")
    A("L_noatomic:\ns_barrier")
    A(f"ds_read_b32 v{vPoll}, v8 offset:32\ns_waitcnt lgkmcnt(0)")
    STAMP(5)
    cntres('s90')
    A("s_and_b32 s90, s90, s91\ns_cbranch_scc0 L_fin")
    A("L_load:")
    mbox_load('s57', 's58')
    A("L_wait:\ns_waitcnt vmcnt(0)")
    A("L_comb:\ns_nop 1")
    A(f"v_max_f32 v12, v{vMx}, v{vY+16}")
    A(f"v_sub_f32 v14, v{vMx}, v12\nv_sub_f32 v16, v{vY+16}, v12")
    A("v_exp_f32 v14, v14\nv_exp_f32 v16, v16")
    A(f"v_mul_f32 v12, v14, v{vLs}\nv_mul_f32 v13, v16, v{vY+17}\nv_add_f32 v12, v12, v13")
    A("v_rcp_f32 v12, v12")
    A("v_mul_f32 v14, v14, v12\nv_mul_f32 v16, v16, v12")
    for i in range(0, 16, 2): A(f"v_pk_mul_f32 {vr(vAcc+i,2)}, {vr(vAcc+i,2)}, v[14:15] op_sel_hi:[1,0]")
    for i in range(0, 16, 2): A(f"v_pk_mul_f32 {vr(vY+i,2)}, {vr(vY+i,2)}, v[16:17] op_sel_hi:[1,0]")
    for i in range(0, 16, 2): A(f"v_pk_add_f32 {vr(vAcc+i,2)}, {vr(vAcc+i,2)}, {vr(vY+i,2)}")
    for r in range(4):
        A(f"v_cvt_pk_bf16_f32 v{80+2*r}, v{vAcc+0*4+r}, v{vAcc+1*4+r}")
        A(f"v_cvt_pk_bf16_f32 v{81+2*r}, v{vAcc+2*4+r}, v{vAcc+3*4+r}")
        A(f"ds_write_b64 v5, v[{80+2*r}:{81+2*r}] offset:{r*16}")
    A("s_waitcnt lgkmcnt(0)")
    A("ds_read_b128 v[88:91], v6\nds_read_b128 v[92:95], v6 offset:1088")
    A("s_waitcnt lgkmcnt(1)")
    A(f"buffer_store_dwordx4 v[88:91], v{vVoff}, {sOut}, s62 offen {oflags}")
    A("s_waitcnt lgkmcnt(0)")
    A(f"buffer_store_dwordx4 v[92:95], v{vVoff}, {sOut}, s62 offen offset:1024 {oflags}")
    if stamp: A("s_waitcnt vmcnt(0)")
    STAMP(6)
    A("L_fin:")
    if fb and clean:
        A("s_cmp_lt_u32 s2, 8\ns_cselect_b32 s42, s42, 0x1000\ns_mov_b64 exec, 1")
        A(f"buffer_store_byte v{vTmp}, v{vTmp}, {sDbg}, s42 offen sc1")
        A("s_mov_b64 exec, -1")
    if enc == 9004: A("s_waitcnt vmcnt(0)\ns_memrealtime s[98:99]")
    if gpad:
        A("s_waitcnt vmcnt(0) lgkmcnt(0)\ns_not_b32 s88, s84\nv_mov_b32 v100, s88\nv_mov_b32 v102, s84\nv_mov_b32 v110, 0\ns_mov_b64 exec, 1")
        A("buffer_atomic_umax v100, v110, s[36:39], 0 offen\nbuffer_atomic_umax v102, v110, s[36:39], 0 offen offset:4\ns_waitcnt vmcnt(0)")
        A(f"L_pad0:\ns_memrealtime s[86:87]\ns_waitcnt lgkmcnt(0)\ns_sub_u32 s86, s86, s84\ns_cmp_lt_u32 s86, {(padto-25)*100}\ns_cbranch_scc1 L_pad0")
        A("buffer_load_dword v101, v110, s[36:39], 0 offen sc1\ns_waitcnt vmcnt(0)\nv_readfirstlane_b32 s84, v101\ns_nop 3\ns_not_b32 s84, s84")
    if enc >= 0:
        A(f"s_waitcnt lgkmcnt(0)\ns_sub_u32 s98, s98, {'s96' if enca >= 0 else 's84'}\ns_add_u32 s84, s84, s98")
    if padto:
        A(f"s_waitcnt vmcnt(0)\nL_pad:\ns_memrealtime s[86:87]\ns_waitcnt lgkmcnt(0)\ns_sub_u32 s86, s86, s84\ns_cmp_lt_u32 s86, {padto*100}\ns_cbranch_scc1 L_pad")
    if stamp:
        A("s_waitcnt lgkmcnt(0)")
        A("s_lshl_b32 s46, s2, 2\ns_add_u32 s46, s46, s40\ns_lshl_b32 s46, s46, 6\ns_add_u32 s46, s46, 0x600000")
        for i in range(7): A(f"v_mov_b32 v{100+i}, s{64+2*i}")
        A("s_getreg_b32 s47, hwreg(HW_REG_XCC_ID)\nv_mov_b32 v107, s47")
        A("s_sub_u32 s82, s82, s80\nv_mov_b32 v108, s82\nv_mov_b32 v109, s79")
        A("v_mov_b32 v110, 0\ns_mov_b64 exec, 1")
        A("buffer_store_dwordx4 v[100:103], v110, s[32:35], s46 offen")
        A("buffer_store_dwordx4 v[104:107], v110, s[32:35], s46 offen offset:16")
        A("buffer_store_dwordx2 v[108:109], v110, s[32:35], s46 offen offset:32")
    A("L_end:\ns_endpgm")
    body, added = fix(o)
    head = HEADER + f"; @launch grid=({NWG},1,1) block=({NW*64},1,1) lds={lds}\n" + \
        f'.amdgcn_target "amdgcn-amd-amdhsa--gfx950"\n.text\n.globl {KN}\n.p2align 8\n.type {KN},@function\n{KN}:\n'
    tail = f"""
.section .rodata,"a"
.p2align 6
.amdhsa_kernel {KN}
  .amdhsa_next_free_vgpr {nv + 256}
  .amdhsa_next_free_sgpr 100
  .amdhsa_accum_offset {nv}
  .amdhsa_group_segment_fixed_size 0
  .amdhsa_kernarg_size 48
  .amdhsa_user_sgpr_count 2
  .amdhsa_user_sgpr_kernarg_segment_ptr 1
  .amdhsa_system_sgpr_workgroup_id_x 1
.end_amdhsa_kernel
"""
    open(path, 'w').write(head + "\n".join(body) + tail)
    print(f"{path}: {len(body)} lines, {added} nop states added", file=sys.stderr)
if __name__ == "__main__":
    kw = {}
    for a in sys.argv[2:]:
        k, v = a.split('=')
        kw[k] = int(v) if (v.lstrip('-').isdigit() and k not in ('wk','wv','boost')) else v.replace('+', ' ')
    gen(sys.argv[1], **kw)
```

```python
import sys, struct, math
from hz import fix
KN = "standalone__gqa_softmax__sampling_kernel"
HEADER = """; Kernarg layout for this problem (48 bytes, ptrs only, base s[0:1]):
"""
def f2u(f): return struct.unpack('<I', struct.pack('<f', f))[0]

def gen(path, W=5, flags='nt', pairmap='adj', stamp=0, touch=0, NT=32, pre=0, padto=0, oflags='', gpad=0, wk='', wv='', w2=0, x2=0, RING=4, cut=0, nocomp=0, force=0, late=0, clrslot=-1, noclr=0, notok=0, nospec=0, P1=6, qflags='', fflags='sc1', w1=0, x1=0, y1=0, pf=0, enc=-1, w0=0, x0=0, qpos=3, boost='', pa=8, ra=3, pb=8, rb=7, enca=-1, fb=0, t1=10, t2=14, fbfl='nt', fbst='', clean=1, oddadd=0):
    NW = 4; NWG = 256
    o = []; A = o.append
    vm = []; st = {'done': 0}
    def VM(text, tag): A(text); vm.append(tag)
    def WAITN(n):
        A(f"s_waitcnt vmcnt({n})"); st['done'] = max(st['done'], len(vm) - n)
    def REQ(tag):
        idx = len(vm) - 1 - vm[::-1].index(tag)
        if idx >= st['done']: WAITN(len(vm) - idx - 1)
    LDS_ST = 65536; LDS_BN = 65536 + 2048
    LDS_FL = LDS_BN + 4 * 2176
    LDS_Q = 77824
    lds = LDS_Q + 8192
    SLOT = 5120; WS_A = 0x500000; WS_FB = 0x800000; TOKEN = 0x13579bdf
    vKld = [1, 2, 3, 4]; vKrd = [5, 6, 7, 8]; vVoff = 9; vQoff = 10
    vMp, vT0, vT1 = 12, 13, 14
    vM = [15, 11]; vA = [16, 18]; vL = [20, 21]; vTmp = 22; vFB = 240
    vAl = 24
    vQ = 56; vVT = 56
    vKF = 88; vS = 120; vO = 88
    vP = 152
    vV = 160
    nv = 160 + 16 * RING
    if fb: nv = 244
    S = lambda b, h, T, r=0: vS + b * 16 + (h * 2 + T) * 4 + r
    P = lambda h, u=0: vP + h * 4 + u
    aP = lambda t, h, u=0: t * 8 + h * 4 + u
    VT = lambda j, u=0: vVT + j * 4 + u
    O = lambda h, j, r=0: vO + (h * 8 + j) * 4 + r
    Vb = lambda n, i, w=0: vV + (n % RING) * 16 + i * 4 + w
    KF = lambda T, s: vKF + (T * 4 + s) * 4
    Q = lambda h, s: vQ + (h * 4 + s) * 4
    vr = lambda r, n=4: f"v[{r}:{r+n-1}]"
    ar = lambda r, n=4: f"a[{r}:{r+n-1}]"
    sK, sV, sQ, sOut, sWs, sDbg = 's[16:19]', 's[20:23]', 's[24:27]', 's[28:31]', 's[32:35]', 's[36:39]'
    def STAMP(i):
        if stamp: A(f"s_memrealtime s[{64+2*i}:{65+2*i}]")
    A(f"s_cmp_ge_u32 s2, {NWG}\ns_cbranch_scc1 L_end")
    A("s_load_dwordx8 s[4:11], s[0:1], 0\ns_load_dwordx4 s[12:15], s[0:1], 32")
    STAMP(0)
    if padto: A("s_memrealtime s[84:85]")
    if stamp:
        A("s_memtime s[80:81]\ns_mov_b32 s83, 0")
        for i in range(1, 8): A(f"s_mov_b64 s[{64+2*i}:{65+2*i}], 0")
    if late:
        A(f"s_bitcmp1_b32 s2, 0\ns_cbranch_scc0 L_go\ns_memrealtime s[84:85]\ns_waitcnt lgkmcnt(0)\nL_late:\ns_memrealtime s[86:87]\ns_waitcnt lgkmcnt(0)\ns_sub_u32 s86, s86, s84\ns_cmp_lt_u32 s86, {late*100}\ns_cbranch_scc1 L_late\nL_go:")
    if pf:
        A("s_getpc_b64 s[96:97]\nL_pc:")
        A(f"s_lshr_b32 s46, s2, 3\ns_lshl_b32 s46, s46, 11")
        A(f"v_lshl_add_u32 v{vV+4}, v0, 3, s46")
        A(f"v_min_u32 v{vV+4}, L_end - L_pc - 4, v{vV+4}")
        VM(f"global_load_dword v{vV+5}, v{vV+4}, s[96:97]", 'x')
    A("v_lshrrev_b32 v1, 6, v0\nv_and_b32 v0, 63, v0")
    A("v_and_b32 v11, 15, v0           ; p / m / n")
    A("v_readfirstlane_b32 s40, v1")
    A("v_lshrrev_b32 v12, 4, v0        ; q / g")
    A("v_lshlrev_b32 v13, 2, v12       ; 4q")
    A("v_xor_b32 v13, v13, v11         ; p ^ 4q")
    A("v_lshlrev_b32 v14, 8, v12       ; q*256")
    for i in range(4):
        A(f"v_xor_b32 v15, {i}, v13\nv_lshl_add_u32 v{vKld[i]}, v15, 4, v14")
    if pairmap == 'adj':
        A("s_lshr_b32 s41, s2, 1\ns_and_b32 s42, s2, 1")
    else:
        A("s_and_b32 s41, s2, 127\ns_lshr_b32 s42, s2, 7")
    A("s_lshl_b32 s43, s42, 2\ns_add_u32 s43, s43, s40      ; widx")
    A("s_lshl_b32 s44, s43, 12      ; K soffset\ns_mov_b32 s45, s44")
    A("s_lshl_b32 s46, s41, 21")
    A("s_lshl_b32 s47, s40, 14")
    A("s_mov_b32 s18, 0x200000\ns_mov_b32 s19, 0x20000")
    A("s_mov_b32 m0, s47")
    A("s_mov_b32 s26, 0x100000\ns_mov_b32 s27, 0x20000")
    A("s_lshl_b32 s51, s41, 13")
    A("s_lshl_b32 s52, s40, 11\ns_add_u32 s62, s52, s51")
    A(f"s_add_u32 s52, s52, {LDS_Q}")
    A("s_and_b32 s54, s40, 1\ns_lshl_b32 s53, s54, 5")
    A(f"v_xor_b32 v{vV+6}, s53, v{vKld[0]}\nv_xor_b32 v{vV+7}, s53, v{vKld[1]}")
    if enc == 9000: A("s_memrealtime s[98:99]")
    A("s_waitcnt lgkmcnt(0)")
    if enc == 9001: A("s_memrealtime s[98:99]")
    A("s_add_u32 s16, s6, s46\ns_addc_u32 s17, s7, 0")
    NS = NT * 8
    wk = str(wk) or str(W); wv = str(wv) or str(W)
    win = [int(wk[k % len(wk)], 16) for k in range(NS)] + [int(wv[k % len(wv)], 16) for k in range(NS)]
    if w2:
        for k in range(2 * NS - x2, 2 * NS): win[k] = w2
    if w0:
        for k in range(x0): win[k] = w0
    if w1:
        for k in range(NS - x1, NS + y1): win[k] = w1
    skip = {}
    if boost:
        for k in range(32, 2 * NS - x2):
            if k % pa == ra: skip[k] = 'a'
            elif k % pb == rb: skip[k] = 'b'
        for k in skip: win[k] += 1
    win += [win[-1]] * 64
    def ready(idx):
        k = idx + 1
        while k - win[k] < idx: k += 1
        return k
    RK = [ready(4 * n + 3) for n in range(2 * NT)]
    for n in range(1, 2 * NT): RK[n] = max(RK[n], RK[n - 1] + 4)
    RV = [ready(NS + 4 * n + 3) for n in range(2 * NT)]
    RV[0] = max(RV[0], RK[-1] + 4)
    for n in range(1, 2 * NT): RV[n] = max(RV[n], min(RV[n - 1] + 4, NS + 4 * n + 4 * RING - 4 - 1))
    work = {}
    def at(slot, fn): work.setdefault(slot, []).append(fn)
    def qload():
        A("s_mov_b32 s24, s4\ns_mov_b32 s25, s5\ns_mov_b32 m0, s52")
        VM(f"buffer_load_dwordx4 v{vV+6}, {sQ}, s62 offen {qflags} lds", 'q')
        VM(f"buffer_load_dwordx4 v{vV+7}, {sQ}, s62 offen offset:1024 {qflags} lds", 'q')
        if qpos % 4 != 3: A(f"s_add_u32 m0, s47, {((qpos//4)%4)*4096}")
    at(qpos, qload)
    def setup2():
        A("v_and_b32 v13, 3, v11\nv_lshlrev_b32 v13, 2, v13\nv_lshrrev_b32 v14, 2, v11\nv_add_u32 v13, v13, v14    ; rho")
        A(f"v_xor_b32 v{vV+8}, v12, v13\nv_lshlrev_b32 v{vV+8}, 4, v{vV+8}\nv_lshl_add_u32 v{vV+8}, v11, 8, v{vV+8}")
        A(f"v_add_u32 v{vV+8}, {LDS_Q}, v{vV+8}")
        for s in range(1, 4): A(f"v_xor_b32 v{vV+8+s}, {64*s}, v{vV+8}")
        A("v_lshlrev_b32 v13, 8, v13\nv_add_u32 v13, s47, v13")
        A("v_xor_b32 v14, v12, v11      ; g ^ m")
        for s in range(4):
            A(f"v_xor_b32 v15, {4*s}, v14\nv_lshl_add_u32 v{vKrd[s]}, v15, 4, v13")
        c = math.log2(math.e) / math.sqrt(128.0)
        A(f"s_mov_b32 s48, 0x{f2u(c):08x}     ; log2(e)/sqrt(128)")
        A(f"v_mov_b32 v{vMp}, 0xff800000")
        A(f"v_mov_b32 v{vL[0]}, 0\nv_mov_b32 v{vL[1]}, 0")
        if enc == 9002: A("s_memrealtime s[98:99]")
    at(win[0] - 1, setup2)
    def qread():
        REQ('q')
        A("s_barrier")
        for h in range(2):
            for s in range(4): A(f"ds_read_b128 {vr(Q(h,s))}, v{vV+8+s} offset:{h*4096}")
    at(RK[0], qread)
    px = 1 if pairmap == 'adj' else 128
    def setup3():
        A("s_add_u32 s20, s8, s46\ns_addc_u32 s21, s9, 0\ns_mov_b32 s22, 0x200000\ns_mov_b32 s23, 0x20000")
        A(f"v_lshlrev_b32 v{vVoff}, 4, v0")
        A("s_mov_b32 s28, s10\ns_mov_b32 s29, s11\ns_mov_b32 s30, 0x100000\ns_mov_b32 s31, 0x20000")
        A("s_mov_b32 s32, s14\ns_mov_b32 s33, s15\ns_mov_b32 s34, 0x1000000\ns_mov_b32 s35, 0x20000")
        A("s_mov_b32 s36, s12\ns_mov_b32 s37, s13\ns_mov_b32 s38, 256\ns_mov_b32 s39, 0x20000")
        A("s_mov_b32 s49, 0x05040100\ns_mov_b32 s50, 0x07060302")
        if boost:
            tab = sum(int(boost[c]) << (2 * c) for c in range(4))
            A("s_getreg_b32 s88, hwreg(HW_REG_XCC_ID, 0, 1)\ns_lshl_b32 s88, s88, 2")
            A("s_lshr_b32 s90, s2, 3\ns_xor_b32 s90, s90, s2\ns_and_b32 s90, s90, 1\ns_lshl_b32 s90, s90, 1\ns_add_u32 s88, s88, s90")
            A(f"s_lshr_b32 s88, {tab}, s88\ns_and_b32 s88, s88, 3")
            A("s_mov_b32 s90, s88\ns_mov_b32 s91, 0\ns_mov_b64 vcc, s[90:91]")
    def setup4():
        A("s_lshl_b32 s55, s2, 2\ns_add_u32 s55, s55, s40")
        A(f"s_xor_b32 s56, s55, {px*4}")
        A(f"s_mul_i32 s63, s55, {SLOT}")
        A(f"s_mul_i32 s57, s56, {SLOT}")
        A(f"s_add_u32 s58, s57, 4096\ns_add_u32 s89, s63, 4096")
        if fb: A("s_and_b32 s59, s41, 3\ns_lshl_b32 s59, s59, 3\ns_lshl_b32 s60, 1, s59\ns_and_b32 s61, s41, 0x7c")
        else: A("s_and_b32 s59, s41, 1\ns_lshl_b32 s59, s59, 4\ns_lshl_b32 s60, 1, s59\ns_lshr_b32 s61, s41, 1\ns_lshl_b32 s61, s61, 2")
        if fb:
            A("s_and_b32 s42, s2, 7\ns_lshl_b32 s42, s42, 4\ns_lshr_b32 s43, s2, 4\ns_add_u32 s42, s42, s43\ns_add_u32 s42, s42, 128")
            A("s_lshr_b32 s43, s2, 3\ns_and_b32 s43, s43, 1\ns_or_b32 s43, s43, s40\ns_cmp_eq_u32 s43, 0\ns_cselect_b32 s42, s42, 0x1000")
            A(f"v_lshlrev_b32 v{vFB}, 1, v0")
            if oddadd: A(f"s_getreg_b32 s43, hwreg(HW_REG_XCC_ID, 0, 1)\ns_mul_i32 s43, s43, {oddadd}")
        A(f"v_mov_b32 v{vTmp}, 0\nv_lshlrev_b32 v{vTmp+1}, 3, v0")
        A(f"s_xor_b32 s92, s2, {px}\ns_lshl_b32 s92, s92, 7\ns_add_u32 s92, s92, {WS_A}")
        A(f"s_lshl_b32 s93, s2, 7\ns_add_u32 s93, s93, {WS_A}")
        VM(f"buffer_load_dword v{vV}, v{vTmp}, {sWs}, s92 offen {fflags}", 'f0')
        VM(f"buffer_load_dword v{vV+1}, v{vTmp}, {sWs}, s93 offen {fflags}", 'f0')
    def touches():
        VM(f"buffer_load_dword v{vV+2}, v{vTmp}, {sV}, s45 offen {flags}", 'x')
        VM(f"buffer_load_dword v{vV+2}, v{vTmp}, {sOut}, s62 offen nt", 'x')
        VM(f"buffer_load_dword v{vV+2}, v{vTmp}, {sWs}, s89 offen offset:768 nt", 'x')
    at(RK[0] + 2, setup3)
    at(RK[0] + 3, setup4)
    if touch: at(touch, touches)
    vPoll = vQoff
    if fb:
        def fb_io(c):
            def f():
                A(f"v_mov_b32 v{vFB+1}, {c}")
                A("s_mov_b64 exec, 1")
                VM(f"buffer_store_byte v{vFB+1}, v{vTmp}, {sDbg}, s42 offen {fbst}", 'fbs')
                A("s_mov_b64 exec, -1")
                VM(f"buffer_load_ushort v{vQoff}, v{vFB}, {sDbg}, 0 offen offset:128 {fbfl}", 'fbl')
            return f
        def fb_use(c):
            def f():
                REQ('fbl')
                A(f"v_and_b32 v{vFB+1}, 0xff, v{vQoff}\nv_lshrrev_b32 v{vQoff}, 8, v{vQoff}")
                A(f"v_cmp_le_u32 vcc, {c}, v{vFB+1}\nv_cmp_le_u32 s[90:91], {c}, v{vQoff}")
                A("s_bcnt1_i32_b64 s88, vcc\ns_bcnt1_i32_b64 s90, s[90:91]\ns_add_u32 s90, s90, s88")
                if oddadd: A("s_add_u32 s90, s90, s43")
                if stamp: A(f"s_lshl_b32 s83, s83, 5\ns_or_b32 s83, s83, s90")
                A(f"s_cmp_ge_u32 s90, {t2}\ns_cselect_b32 s88, 2, 0")
                A(f"s_cmp_ge_u32 s90, {t1}\ns_cselect_b64 vcc, -1, 0")
            return f
        c = 1
        for k in range(fb + 2, 2 * NS - x2 - 8, fb):
            at(k, fb_io(c)); at(k + 8, fb_use(c)); c += 1
    def flag0():
        REQ('f0')
        A(f"v_readfirstlane_b32 s94, v{vV}\nv_readfirstlane_b32 s95, v{vV+1}\ns_nop 1\ns_add_u32 s95, s95, 1")
    at(RK[0] + 3 + 16, flag0)
    def poll(track):
        t = f"buffer_load_dword v{vPoll}, v{vTmp}, {sWs}, s92 offen sc1"
        if track: VM(t, 'poll')
        else: A(t)
    def pollres(dst):
        A(f"v_readfirstlane_b32 {dst}, v{vPoll}")
        A(f"s_xor_b32 {dst}, {dst}, s94")
    def cntres(dst):
        A(f"v_readfirstlane_b32 {dst}, v{vPoll}")
        A(f"s_lshr_b32 {dst}, {dst}, s59\ns_and_b32 {dst}, {dst}, 0xff")
    if cut != 1: at(2 * NS - P1, lambda: poll(True))
    def kread(t, T):
        def f():
            n = 2 * t + T
            REQ(('ld', 4 * n + 3))
            for s in range(4):
                A(f"ds_read_b128 {vr(KF(T,s))}, v{vKrd[s]} offset:{(n%4)*4096}")
        return f
    def kmma(t, T, extra=None):
        def f():
            A("s_waitcnt lgkmcnt(0)")
            b = t & 1; k = 0
            for s in range(4):
                for h in range(2):
                    cin = '0' if s == 0 else vr(S(b, h, T))
                    A(f"v_mfma_f32_16x16x32_bf16 {vr(S(b,h,T))}, {vr(KF(T,s))}, {vr(Q(h,s))}, {cin}")
                    if extra and k < len(extra) and (s * 2 + h) % 2 == 1: A(extra[k]); k += 1
        return f
    def smax(t):
        def f():
            b = t & 1; tt = [vT0, vT1]
            for h in range(2): A(f"v_max3_f32 v{tt[h]}, v{S(b,h,0,0)}, v{S(b,h,0,1)}, v{S(b,h,0,2)}")
            for h in range(2): A(f"v_max3_f32 v{tt[h]}, v{tt[h]}, v{S(b,h,0,3)}, v{S(b,h,1,0)}")
            for h in range(2): A(f"v_max3_f32 v{tt[h]}, v{tt[h]}, v{S(b,h,1,1)}, v{S(b,h,1,2)}")
            for h in range(2): A(f"v_max_f32 v{tt[h]}, v{tt[h]}, v{S(b,h,1,3)}")
            A(f"v_permlane32_swap_b32 v{vT0}, v{vT1}")
            A(f"v_max_f32 v{vT0}, v{vT0}, v{vT1}")
            A(f"v_mov_b32 v{vT1}, v{vT0}")
            A(f"v_permlane16_swap_b32 v{vT0}, v{vT1}")
            A(f"v_max_f32 v{vT0}, v{vT0}, v{vT1}")
            A(f"v_mul_f32 v{vT0}, s48, v{vT0}")
            A(f"v_max_f32 v{vM[0]}, v{vMp}, v{vT0}")
            A(f"v_sub_f32 v{vT1}, v{vMp}, v{vM[0]}")
            A(f"v_exp_f32 v{vAl+t}, v{vT1}")
            A(f"v_mov_b32 v{vMp}, v{vM[0]}")
            A(f"v_mov_b32 v{vM[1]}, v{vM[0]}")
            A(f"v_mov_b32 v{vA[0]}, v{vAl+t}")
            A(f"v_mov_b32 v{vA[1]}, v{vAl+t}")
            A(f"v_permlane32_swap_b32 v{vM[0]}, v{vM[1]}")
            A(f"v_permlane32_swap_b32 v{vA[0]}, v{vA[1]}")
        return f
    def sregs(b): return [S(b, h, T, r) for h in range(2) for T in range(2) for r in range(4)]
    def sfma(t):
        def f():
            b = t & 1
            for i, r in enumerate(sregs(b)): A(f"v_fma_f32 v{r}, v{r}, s48, -v{vM[i>>3]}")
            for r in sregs(b)[:4]: A(f"v_exp_f32 v{r}, v{r}")
        return f
    def sexp(t, lo, hi):
        def f():
            for r in sregs(t & 1)[lo:hi]: A(f"v_exp_f32 v{r}, v{r}")
        return f
    def spack(t):
        def f():
            b = t & 1
            for h in range(2):
                for u in range(4):
                    T, x = u >> 1, u & 1
                    A(f"v_cvt_pk_bf16_f32 v{P(h,u)}, v{S(b,h,T,2*x)}, v{S(b,h,T,2*x+1)}")
            for h in range(2):
                for u in range(4): A(f"v_accvgpr_write_b32 a{aP(t,h,u)}, v{P(h,u)}")
        return f
    def lsum(t):
        def f():
            b = t & 1
            for h in range(2): A(f"v_fma_f32 v{vL[h]}, v{vL[h]}, v{vA[h]}, v{S(b,h,0,0)}")
            for idx in range(1, 8):
                for h in range(2): A(f"v_add_f32 v{vL[h]}, v{vL[h]}, v{S(b,h,idx>>2,idx&3)}")
        return f
    for t in range(NT):
        a, b_ = RK[2 * t], RK[2 * t + 1]
        assert b_ >= a + 2
        if t > 0: assert RK[2 * t - 1] + 3 < a + 1 < RK[2 * t - 1] + 6 or (RK[2*t-1] + 3, a + 1)
        assert (a + 1 < 4 * (2 * t + 4) or 2 * t + 4 >= 2 * NT) and (b_ + 1 < 4 * (2 * t + 1 + 4) or 2 * t + 5 >= 2 * NT)
        at(a, kread(t, 0))
        ex = [f"v_exp_f32 v{r}, v{r}" for r in sregs((t - 1) & 1)[12:16]] if t > 0 else None
        at(a + 1, kmma(t, 0, ex))
        at(b_, kread(t, 1))
        at(b_ + 1, kmma(t, 1))
        at(b_ + 2, smax(t))
        at(b_ + 3, sfma(t))
        at(b_ + 4, sexp(t, 4, 12))
        nxt = RK[2 * t + 2] + 1 if t < NT - 1 else b_ + 5
        assert nxt > b_ + 3
        if t == NT - 1: at(b_ + 5, sexp(t, 12, 16))
        at(max(nxt, b_ + 4) + 1, spack(t))
        at(max(nxt, b_ + 4) + 2, lsum(t))
        if t < NT - 1: assert max(nxt, b_ + 4) + 2 <= RK[2 * t + 3] + 1
    kdone = RK[2 * NT - 1] + 7
    def perm(t, j, u):
        T, x, w = u >> 1, u & 1, j >> 1
        n = 2 * t + T
        REQ(('ld', NS + 4 * n + 2 * x + 1))
        A(f"v_perm_b32 v{VT(j,u)}, v{Vb(n,2*x+1,w)}, v{Vb(n,2*x,w)}, {'s49' if j%2==0 else 's50'}")
    def v1(t, i):
        def f():
            if t > 0:
                if i == 0:
                    A(f"v_mov_b32 v{vA[0]}, v{vAl+t}\nv_mov_b32 v{vA[1]}, v{vAl+t}")
                    A(f"v_permlane32_swap_b32 v{vA[0]}, v{vA[1]}")
                for j in (2 * i, 2 * i + 1):
                    for h in range(2):
                        for r in (0, 2):
                            A(f"v_pk_mul_f32 {vr(O(h,j,r),2)}, {vr(O(h,j,r),2)}, {vr(vA[h],2)} op_sel_hi:[1,0]")
            for j in (2 * i, 2 * i + 1):
                for u in (0, 1): perm(t, j, u)
        return f
    def pv(t, j):
        for h in range(2):
            cin = '0' if t == 0 else vr(O(h, j))
            A(f"v_mfma_f32_16x16x32_bf16 {vr(O(h,j))}, {vr(VT(j))}, {ar(aP(t,h))}, {cin}")
    def v2(t, i):
        def f():
            for j in (2 * i, 2 * i + 1):
                for u in (2, 3): perm(t, j, u)
            for j in (2 * i, 2 * i + 1): pv(t, j)
        return f
    vY = 24
    def mbox_load(so_d, so_s, track=False):
        E = (lambda x: VM(x, 'y')) if track else A
        E(f"buffer_load_dwordx2 v[{vY+16}:{vY+17}], v{vTmp+1}, {sWs}, {so_s} offen sc1")
        for i in range(4): E(f"buffer_load_dwordx4 {vr(vY+4*i)}, v{vVoff}, {sWs}, {so_d} offen offset:{i*1024} sc1")
    def owrite(j):
        for h in range(2): A(f"ds_write_b128 v{1 if j < 4 else 2}, {vr(O(h,j))} offset:{(h*8+j)*1024}")
    def v2last(t):
        def f():
            for j in range(8): perm(t, j, 2)
            perm(t, 0, 3); perm(t, 1, 3)
            if cut != 1:
                REQ('poll')
                pollres('s90')
                if force in (1, 2, 3): A("s_mov_b32 s90, 0\ns_cmp_lg_u32 s90, 0")
                if force == 4: A("s_bitcmp1_b32 s40, 0\ns_cselect_b32 s90, 0, s90\ns_cmp_lg_u32 s90, 0")
                A("s_cbranch_scc0 L_nos1")
                mbox_load('s57', 's58')
                A(f"L_nos1:\nv_mov_b32 v{vPoll}, s90\nds_write_b32 v7, v{vPoll}")
            for j in range(8):
                pv(t, j)
                if j + 2 < 8: perm(t, j + 2, 3)
                if j >= 3 and cut != 1: owrite(j - 3)
            if cut != 1:
                for j in range(5, 8): owrite(j)
        return f
    def stats():
        A(f"v_permlane32_swap_b32 v{vL[0]}, v{vL[1]}")
        A(f"v_add_f32 v{vT0}, v{vL[0]}, v{vL[1]}")
        A(f"v_mov_b32 v{vT1}, v{vT0}")
        A(f"v_permlane16_swap_b32 v{vT0}, v{vT1}")
        A(f"v_add_f32 v{vT0}, v{vT0}, v{vT1}")
        A(f"s_lshl_b32 s46, s40, 9\ns_add_u32 s46, s46, {LDS_ST}")
        A(f"v_lshl_add_u32 v{vT1}, v0, 3, s46")
        A(f"ds_write_b64 v{vT1}, v[{vMp}:{vMp+1}]")
        A(f"v_add_u32 v1, s47, v{vVoff}")
        A(f"v_xor_b32 v2, 0x80, v1")
        A("s_lshr_b32 s53, s40, 1       ; h\ns_and_b32 s54, s40, 1")
        A("v_and_b32 v6, 7, v0          ; q'\nv_bfe_u32 v7, v0, 3, 1      ; jh\nv_lshrrev_b32 v8, 4, v0     ; g")
        A("s_lshl_b32 s46, s54, 3\nv_add_u32 v5, s46, v6       ; q")
        A(f"s_lshl_b32 s46, s53, 8\ns_add_u32 s46, s46, {LDS_ST}")
        A(f"v_lshl_add_u32 v3, v5, 3, s46")
        A("v_lshlrev_b32 v4, 3, v7\nv_xor_b32 v4, v4, v5\nv_lshlrev_b32 v4, 4, v4      ; (q ^ 8jh)*16")
        A("v_lshl_add_u32 v4, v8, 8, v4\nv_lshl_add_u32 v4, v7, 12, v4")
        A("s_lshl_b32 s46, s53, 13\nv_add_u32 v4, s46, v4")
        A(f"s_mul_i32 s46, s40, 2176\ns_add_u32 s46, s46, {LDS_BN}")
        A("v_mul_u32_u24 v5, 272, v6\nv_lshl_add_u32 v5, v8, 6, v5\nv_lshl_add_u32 v5, v7, 3, v5\nv_add_u32 v5, s46, v5")
        A("v_mul_u32_u24 v6, 272, v8\nv_and_b32 v7, 15, v0\nv_lshl_add_u32 v6, v7, 4, v6\nv_add_u32 v6, s46, v6")
        A(f"s_lshl_b32 s46, s40, 2\ns_add_u32 s46, s46, {LDS_FL}\nv_mov_b32 v7, s46\nv_mov_b32 v8, {LDS_FL}")
    at(RV[3] + 1, stats)
    assert RV[0] > RK[2 * NT - 1] + 1
    prev = 0
    for t in range(NT):
        a = max(RV[2 * t], prev + 1)
        for i in range(4): at(a + i, v1(t, i))
        b_ = max(RV[2 * t + 1], a + 4)
        if t == 0: assert b_ > kdone, (b_, kdone)
        if t == 1: assert a > kdone
        assert a + 3 < NS + 4 * (2 * t + RING) and b_ + 3 < NS + 4 * (2 * t + 1 + RING), (t, a, b_)
        if t < NT - 1:
            for i in range(4): at(b_ + i, v2(t, i))
        else: at(b_, v2last(t))
        prev = b_ + 3
    last = max(work)
    for k in range(last + 1):
        if k < 2 * NS:
            n, i = (k % NS) // 4, k % 4
            if k < NS:
                if i == 0 and n > 0:
                    A(f"s_add_u32 s44, s44, 0x8000\ns_add_u32 m0, s47, {(n%4)*4096}")
            elif i == 0 and n > 0: A("s_add_u32 s45, s45, 0x8000")
            if k >= win[k]: REQ(('ld', k - win[k]))
            if k in skip:
                idx = len(vm) - 1 - vm[::-1].index(('ld', k - win[k] + 1))
                if idx >= st['done']:
                    if skip[k] == 'a': A(f"s_cbranch_vccnz L_sk{k}")
                    else: A(f"s_bitcmp1_b32 s88, 1\ns_cbranch_scc1 L_sk{k}")
                    A(f"s_waitcnt vmcnt({len(vm) - idx - 1})\nL_sk{k}:")
            if k < NS: VM(f"buffer_load_dwordx4 v{vKld[i]}, {sK}, s44 offen offset:{i*1024} {flags} lds", ('ld', k))
            else: VM(f"buffer_load_dwordx4 {vr(Vb(n,i))}, v{vVoff}, {sV}, s45 offen offset:{i*1024} {flags}", ('ld', k))
        if stamp and k == NS: STAMP(1)
        if enc >= 0 and k == enc: A("s_memrealtime s[98:99]")
        if enca >= 0 and k == enca: A("s_memrealtime s[96:97]")
        for f in work.get(k, []):
            if nocomp == 1 and f not in (setup2, setup3, setup4, qload, stats): continue
            if nocomp == 2 and f not in (setup2, setup3, setup4, qload, stats) and k >= RV[0] + 8: continue
            if nocomp == 3 and f not in (setup2, setup3, setup4, qload, stats) and k < RV[0]: continue
            f()
    if nocomp: A("s_waitcnt vmcnt(0)")
    STAMP(2)
    if enc == 9999: A("s_memrealtime s[98:99]")
    if enca == 9999: A("s_memrealtime s[96:97]")
    if stamp: A("s_mov_b32 s79, s83\ns_memtime s[82:83]")
    if cut == 1: A("s_branch L_fin")
    A("s_waitcnt lgkmcnt(0)\ns_barrier")
    vSt = 42; vX = 160; vMx = 50; vLs = 51; vF = 52; vAcc = 60
    A("ds_read_b128 v[76:79], v8")
    for w in range(4): A(f"ds_read_b64 v[{vSt+2*w}:{vSt+2*w+1}], v3 offset:{w*512}")
    for w in range(4):
        for i in range(4): A(f"ds_read_b128 {vr(vX+(w*4+i)*4)}, v4 offset:{w*16384+i*1024}")
    A("s_waitcnt lgkmcnt(15)")
    A("v_or3_b32 v76, v76, v77, v78\nv_or_b32 v76, v76, v79")
    A(f"v_max3_f32 v{vMx}, v{vSt}, v{vSt+2}, v{vSt+4}")
    A("v_readfirstlane_b32 s91, v76")
    A(f"v_max_f32 v{vMx}, v{vMx}, v{vSt+6}")
    for w in range(4): A(f"v_sub_f32 v{vF+2*w}, v{vSt+2*w}, v{vMx}")
    for w in range(4): A(f"v_exp_f32 v{vF+2*w}, v{vF+2*w}")
    A(f"v_mul_f32 v{vLs}, v{vF}, v{vSt+1}")
    for w in range(1, 4): A(f"v_fmac_f32 v{vLs}, v{vF+2*w}, v{vSt+2*w+1}")
    A("s_waitcnt lgkmcnt(12)")
    for i in range(0, 16, 2): A(f"v_pk_mul_f32 {vr(vAcc+i,2)}, {vr(vX+i,2)}, {vr(vF,2)} op_sel_hi:[1,0]")
    for w in range(1, 4):
        A(f"s_waitcnt lgkmcnt({12-4*w})")
        for i in range(0, 16, 2): A(f"v_pk_fma_f32 {vr(vAcc+i,2)}, {vr(vX+w*16+i,2)}, {vr(vF+2*w,2)}, {vr(vAcc+i,2)} op_sel_hi:[1,0,1]")
    STAMP(3)
    if enc in (9003, 9005, 9006): A("s_memrealtime s[98:99]")
    if enca in (9003, 9005): A("s_memrealtime s[96:97]")
    if cut == 2: A("s_branch L_comb")
    if cut == 3: A("s_branch L_fin")
    A("s_cmp_lg_u32 s91, 0\ns_cbranch_scc1 L_have")
    for i in range(4):
        A(f"buffer_store_dwordx4 {vr(vAcc+4*i)}, v{vVoff}, {sWs}, s63 offen offset:{i*1024} sc1")
    A(f"buffer_store_dwordx2 v[{vMx}:{vMx+1}], v{vTmp+1}, {sWs}, s89 offen sc1")
    poll(False)
    A("s_waitcnt vmcnt(0)")
    STAMP(4)
    if enc == 9005: A("s_memrealtime s[98:99]")
    if enca == 9005: A("s_memrealtime s[96:97]")
    pollres('s90')
    if force == 2: A("s_mov_b32 s90, 0\ns_cmp_lg_u32 s90, 0")
    if force == 3: A("s_bitcmp1_b32 s40, 1\ns_cselect_b32 s90, 0, s90\ns_cmp_lg_u32 s90, 0")
    A("s_cbranch_scc0 L_nos2")
    mbox_load('s57', 's58')
    A(f"L_nos2:\nv_mov_b32 v{vPoll}, s90\nds_write_b32 v7, v{vPoll} offset:16")
    A("s_waitcnt lgkmcnt(0)\ns_barrier")
    A("ds_read_b128 v[76:79], v8 offset:16\ns_waitcnt lgkmcnt(0)")
    A("v_or3_b32 v76, v76, v77, v78\nv_or_b32 v76, v76, v79\nv_readfirstlane_b32 s91, v76")
    A("s_cmp_lg_u32 s91, 0\ns_cbranch_scc1 L_have")
    A("s_cmp_lg_u32 s40, 0\ns_cbranch_scc1 L_noatomic")
    A(f"v_mov_b32 v{vPoll}, s60\nv_mov_b32 v76, s95")
    A("s_mov_b64 exec, 1")
    A(f"buffer_store_dword v76, v{vTmp}, {sWs}, s93 offen sc1")
    A(f"buffer_atomic_add v{vPoll}, v{vTmp}, {sDbg}, s61 offen sc0")
    A("s_waitcnt vmcnt(0)")
    A(f"ds_write_b32 v8, v{vPoll} offset:32")
    A("s_waitcnt lgkmcnt(0)")
    A("s_mov_b64 exec, -1")
    A("L_noatomic:\ns_barrier")
    A(f"ds_read_b32 v{vPoll}, v8 offset:32\ns_waitcnt lgkmcnt(0)")
    STAMP(5)
    if enc == 9006: A("s_memrealtime s[98:99]")
    cntres('s91')
    A("s_cbranch_scc0 L_fin")
    A("L_have:")
    A("s_cmp_lg_u32 s90, 0\ns_cbranch_scc1 L_wait")
    mbox_load('s57', 's58')
    A("L_wait:\ns_waitcnt vmcnt(0)")
    A("L_comb:\ns_nop 1")
    A(f"v_max_f32 v12, v{vMx}, v{vY+16}")
    A(f"v_sub_f32 v14, v{vMx}, v12\nv_sub_f32 v16, v{vY+16}, v12")
    A("v_exp_f32 v14, v14\nv_exp_f32 v16, v16")
    A(f"v_mul_f32 v12, v14, v{vLs}\nv_mul_f32 v13, v16, v{vY+17}\nv_add_f32 v12, v12, v13")
    A("v_rcp_f32 v12, v12")
    A("v_mul_f32 v14, v14, v12\nv_mul_f32 v16, v16, v12")
    for i in range(0, 16, 2): A(f"v_pk_mul_f32 {vr(vAcc+i,2)}, {vr(vAcc+i,2)}, v[14:15] op_sel_hi:[1,0]")
    for i in range(0, 16, 2): A(f"v_pk_mul_f32 {vr(vY+i,2)}, {vr(vY+i,2)}, v[16:17] op_sel_hi:[1,0]")
    for i in range(0, 16, 2): A(f"v_pk_add_f32 {vr(vAcc+i,2)}, {vr(vAcc+i,2)}, {vr(vY+i,2)}")
    for r in range(4):
        A(f"v_cvt_pk_bf16_f32 v{80+2*r}, v{vAcc+0*4+r}, v{vAcc+1*4+r}")
        A(f"v_cvt_pk_bf16_f32 v{81+2*r}, v{vAcc+2*4+r}, v{vAcc+3*4+r}")
        A(f"ds_write_b64 v5, v[{80+2*r}:{81+2*r}] offset:{r*16}")
    A("s_waitcnt lgkmcnt(0)")
    A("ds_read_b128 v[88:91], v6\nds_read_b128 v[92:95], v6 offset:1088")
    A("s_waitcnt lgkmcnt(1)")
    A(f"buffer_store_dwordx4 v[88:91], v{vVoff}, {sOut}, s62 offen {oflags}")
    A("s_waitcnt lgkmcnt(0)")
    A(f"buffer_store_dwordx4 v[92:95], v{vVoff}, {sOut}, s62 offen offset:1024 {oflags}")
    if stamp: A("s_waitcnt vmcnt(0)")
    STAMP(6)
    A("L_fin:")
    if fb and clean:
        A("s_cmp_lt_u32 s2, 8\ns_cselect_b32 s42, s42, 0x1000\ns_mov_b64 exec, 1")
        A(f"buffer_store_byte v{vTmp}, v{vTmp}, {sDbg}, s42 offen sc1")
        A("s_mov_b64 exec, -1")
    if enc == 9004: A("s_waitcnt vmcnt(0)\ns_memrealtime s[98:99]")
    if gpad:
        A("s_waitcnt vmcnt(0) lgkmcnt(0)\ns_not_b32 s88, s84\nv_mov_b32 v100, s88\nv_mov_b32 v102, s84\nv_mov_b32 v110, 0\ns_mov_b64 exec, 1")
        A("buffer_atomic_umax v100, v110, s[36:39], 0 offen\nbuffer_atomic_umax v102, v110, s[36:39], 0 offen offset:4\ns_waitcnt vmcnt(0)")
        A(f"L_pad0:\ns_memrealtime s[86:87]\ns_waitcnt lgkmcnt(0)\ns_sub_u32 s86, s86, s84\ns_cmp_lt_u32 s86, {(padto-25)*100}\ns_cbranch_scc1 L_pad0")
        A("buffer_load_dword v101, v110, s[36:39], 0 offen sc1\ns_waitcnt vmcnt(0)\nv_readfirstlane_b32 s84, v101\ns_nop 3\ns_not_b32 s84, s84")
    if enc >= 0:
        A(f"s_waitcnt lgkmcnt(0)\ns_sub_u32 s98, s98, {'s96' if enca >= 0 else 's84'}\ns_add_u32 s84, s84, s98")
    if padto:
        A(f"s_waitcnt vmcnt(0)\nL_pad:\ns_memrealtime s[86:87]\ns_waitcnt lgkmcnt(0)\ns_sub_u32 s86, s86, s84\ns_cmp_lt_u32 s86, {padto*100}\ns_cbranch_scc1 L_pad")
    if stamp:
        A("s_waitcnt lgkmcnt(0)")
        A("s_lshl_b32 s46, s2, 2\ns_add_u32 s46, s46, s40\ns_lshl_b32 s46, s46, 6\ns_add_u32 s46, s46, 0x600000")
        for i in range(7): A(f"v_mov_b32 v{100+i}, s{64+2*i}")
        A("s_getreg_b32 s47, hwreg(HW_REG_XCC_ID)\nv_mov_b32 v107, s47")
        A("s_sub_u32 s82, s82, s80\nv_mov_b32 v108, s82\nv_mov_b32 v109, s79")
        A("v_mov_b32 v110, 0\ns_mov_b64 exec, 1")
        A("buffer_store_dwordx4 v[100:103], v110, s[32:35], s46 offen")
        A("buffer_store_dwordx4 v[104:107], v110, s[32:35], s46 offen offset:16")
        A("buffer_store_dwordx2 v[108:109], v110, s[32:35], s46 offen offset:32")
    A("L_end:\ns_endpgm")
    body, added = fix(o)
    head = HEADER + f"; @launch grid=({NWG},1,1) block=({NW*64},1,1) lds={lds}\n" + \
        f'.amdgcn_target "amdgcn-amd-amdhsa--gfx950"\n.text\n.globl {KN}\n.p2align 8\n.type {KN},@function\n{KN}:\n'
    tail = f"""
.section .rodata,"a"
.p2align 6
.amdhsa_kernel {KN}
  .amdhsa_next_free_vgpr {nv + 256}
  .amdhsa_next_free_sgpr 100
  .amdhsa_accum_offset {nv}
  .amdhsa_group_segment_fixed_size 0
  .amdhsa_kernarg_size 48
  .amdhsa_user_sgpr_count 2
  .amdhsa_user_sgpr_kernarg_segment_ptr 1
  .amdhsa_system_sgpr_workgroup_id_x 1
.end_amdhsa_kernel
"""
    open(path, 'w').write(head + "\n".join(body) + tail)
    print(f"{path}: {len(body)} lines, {added} nop states added", file=sys.stderr)
if __name__ == "__main__":
    kw = {}
    for a in sys.argv[2:]:
        k, v = a.split('=')
        kw[k] = int(v) if (v.lstrip('-').isdigit() and k not in ('wk','wv','boost')) else v.replace('+', ' ')
    gen(sys.argv[1], **kw)
```

```python
import sys, struct, math
from hz import fix
KN = "standalone__gqa_softmax__sampling_kernel"
HEADER = """; Kernarg layout for this problem (48 bytes, ptrs only, base s[0:1]):
"""
def f2u(f): return struct.unpack('<I', struct.pack('<f', f))[0]

def gen(path, W=5, flags='nt', pairmap='adj', stamp=0, touch=0, NT=32, pre=0, padto=0, oflags='', gpad=0, wk='', wv='', w2=0, x2=0, RING=4, cut=0, nocomp=0, force=0, late=0, clrslot=-1, noclr=0, notok=0, nospec=0, P1=6, qflags='', fflags='sc1', w1=0, x1=0, y1=0, pf=0, enc=-1, w0=0, x0=0, qpos=3, boost='', pa=8, ra=3, pb=8, rb=7, enca=-1, fb=0, t1=10, t2=14, fbfl='nt', fbst='', clean=1, oddadd=0, lay=0, csz=4, sflag=0, xt='', fb0=0, t0=-1, pc=16, rc=5, bprime=0):
    NW = 4; NWG = 256
    o = []; A = o.append
    vm = []; st = {'done': 0}
    def VM(text, tag): A(text); vm.append(tag)
    def WAITN(n):
        A(f"s_waitcnt vmcnt({n})"); st['done'] = max(st['done'], len(vm) - n)
    def REQ(tag):
        idx = len(vm) - 1 - vm[::-1].index(tag)
        if idx >= st['done']: WAITN(len(vm) - idx - 1)
    LDS_ST = 65536; LDS_BN = 65536 + 2048
    LDS_FL = LDS_BN + 4 * 2176
    LDS_Q = 77824
    lds = LDS_Q + 8192
    SLOT = 5120; WS_A = 0x500000; WS_FB = 0x800000; TOKEN = 0x13579bdf
    vKld = [1, 2, 3, 4]; vKrd = [5, 6, 7, 8]; vVoff = 9; vQoff = 10
    vMp, vT0, vT1 = 12, 13, 14
    vM = [15, 11]; vA = [16, 18]; vL = [20, 21]; vTmp = 22; vFB = 240
    vAl = 24
    vQ = 56; vVT = 56
    vKF = 88; vS = 120; vO = 88
    vP = 152
    vV = 160
    nv = 160 + 16 * RING
    if fb: nv = 244
    S = lambda b, h, T, r=0: vS + b * 16 + (h * 2 + T) * 4 + r
    P = lambda h, u=0: vP + h * 4 + u
    aP = lambda t, h, u=0: t * 8 + h * 4 + u
    VT = lambda j, u=0: vVT + j * 4 + u
    O = lambda h, j, r=0: vO + (h * 8 + j) * 4 + r
    Vb = lambda n, i, w=0: vV + (n % RING) * 16 + i * 4 + w
    KF = lambda T, s: vKF + (T * 4 + s) * 4
    Q = lambda h, s: vQ + (h * 4 + s) * 4
    vr = lambda r, n=4: f"v[{r}:{r+n-1}]"
    ar = lambda r, n=4: f"a[{r}:{r+n-1}]"
    sK, sV, sQ, sOut, sWs, sDbg = 's[16:19]', 's[20:23]', 's[24:27]', 's[28:31]', 's[32:35]', 's[36:39]'
    def STAMP(i):
        if stamp: A(f"s_memrealtime s[{64+2*i}:{65+2*i}]")
    A(f"s_cmp_ge_u32 s2, {NWG}\ns_cbranch_scc1 L_end")
    A("s_load_dwordx8 s[4:11], s[0:1], 0\ns_load_dwordx4 s[12:15], s[0:1], 32")
    STAMP(0)
    if padto: A("s_memrealtime s[84:85]")
    if stamp:
        A("s_memtime s[80:81]\ns_mov_b32 s83, 0")
        for i in range(1, 8): A(f"s_mov_b64 s[{64+2*i}:{65+2*i}], 0")
    if late:
        A(f"s_bitcmp1_b32 s2, 0\ns_cbranch_scc0 L_go\ns_memrealtime s[84:85]\ns_waitcnt lgkmcnt(0)\nL_late:\ns_memrealtime s[86:87]\ns_waitcnt lgkmcnt(0)\ns_sub_u32 s86, s86, s84\ns_cmp_lt_u32 s86, {late*100}\ns_cbranch_scc1 L_late\nL_go:")
    if pf == 1:
        A("s_getpc_b64 s[96:97]\nL_pc:")
        A(f"s_lshr_b32 s46, s2, 3\ns_lshl_b32 s46, s46, 11")
        A(f"v_lshl_add_u32 v{vV+4}, v0, 3, s46")
        A(f"v_min_u32 v{vV+4}, L_end - L_pc - 4, v{vV+4}")
        VM(f"global_load_dword v{vV+5}, v{vV+4}, s[96:97]", 'x')
    A("v_lshrrev_b32 v1, 6, v0\nv_and_b32 v0, 63, v0")
    A("v_and_b32 v11, 15, v0           ; p / m / n")
    A("v_readfirstlane_b32 s40, v1")
    A("v_lshrrev_b32 v12, 4, v0        ; q / g")
    A("v_lshlrev_b32 v13, 2, v12       ; 4q")
    A("v_xor_b32 v13, v13, v11         ; p ^ 4q")
    A("v_lshlrev_b32 v14, 8, v12       ; q*256")
    for i in range(4):
        A(f"v_xor_b32 v15, {i}, v13\nv_lshl_add_u32 v{vKld[i]}, v15, 4, v14")
    if pairmap == 'adj':
        A("s_lshr_b32 s41, s2, 1\ns_and_b32 s42, s2, 1")
    else:
        A("s_and_b32 s41, s2, 127\ns_lshr_b32 s42, s2, 7")
    if lay == 0: A("s_lshl_b32 s43, s42, 2\ns_add_u32 s43, s43, s40      ; widx")
    else: A("s_lshl_b32 s43, s40, 1\ns_add_u32 s43, s43, s42      ; widx")
    A(f"s_mul_i32 s44, s43, {csz*1024}      ; K soffset\ns_mov_b32 s45, s44")
    A("s_lshl_b32 s46, s41, 21")
    A("s_lshl_b32 s47, s40, 14")
    A("s_mov_b32 s18, 0x200000\ns_mov_b32 s19, 0x20000")
    A("s_mov_b32 m0, s47")
    A("s_mov_b32 s26, 0x100000\ns_mov_b32 s27, 0x20000")
    A("s_lshl_b32 s51, s41, 13")
    A("s_lshl_b32 s52, s40, 11\ns_add_u32 s62, s52, s51")
    A(f"s_add_u32 s52, s52, {LDS_Q}")
    A("s_and_b32 s54, s40, 1\ns_lshl_b32 s53, s54, 5")
    A(f"v_xor_b32 v{vV+6}, s53, v{vKld[0]}\nv_xor_b32 v{vV+7}, s53, v{vKld[1]}")
    if enc == 9000: A("s_memrealtime s[98:99]")
    A("s_waitcnt lgkmcnt(0)")
    if enc == 9001: A("s_memrealtime s[98:99]")
    A("s_add_u32 s16, s6, s46\ns_addc_u32 s17, s7, 0")
    NS = NT * 8
    wk = str(wk) or str(W); wv = str(wv) or str(W)
    win = [int(wk[k % len(wk)], 16) for k in range(NS)] + [int(wv[k % len(wv)], 16) for k in range(NS)]
    if w2:
        for k in range(2 * NS - x2, 2 * NS): win[k] = w2
    if w0:
        for k in range(x0): win[k] = w0
    if w1:
        for k in range(NS - x1, NS + y1): win[k] = w1
    skip = {}
    if boost:
        for k in range(32, 2 * NS - x2):
            if k % pa == ra: skip[k] = 'a'
            elif k % pb == rb: skip[k] = 'b'
        for k in skip: win[k] += 1
    win += [win[-1]] * 64
    def ready(idx):
        k = idx + 1
        while k - win[k] < idx: k += 1
        return k
    RK = [ready(4 * n + 3) for n in range(2 * NT)]
    for n in range(1, 2 * NT): RK[n] = max(RK[n], RK[n - 1] + 4)
    RV = [ready(NS + 4 * n + 3) for n in range(2 * NT)]
    RV[0] = max(RV[0], RK[-1] + 4)
    for n in range(1, 2 * NT): RV[n] = max(RV[n], min(RV[n - 1] + 4, NS + 4 * n + 4 * RING - 4 - 1))
    work = {}
    def at(slot, fn): work.setdefault(slot, []).append(fn)
    def qload():
        A("s_mov_b32 s24, s4\ns_mov_b32 s25, s5\ns_mov_b32 m0, s52")
        VM(f"buffer_load_dwordx4 v{vV+6}, {sQ}, s62 offen {qflags} lds", 'q')
        VM(f"buffer_load_dwordx4 v{vV+7}, {sQ}, s62 offen offset:1024 {qflags} lds", 'q')
        if qpos % 4 != 3: A(f"s_add_u32 m0, s47, {((qpos//4)%4)*4096}")
    at(qpos, qload)
    def setup2():
        if pf == 2:
            A("s_getpc_b64 s[96:97]\nL_pc:")
            A("s_lshr_b32 s53, s2, 3\ns_lshl_b32 s53, s53, 2\ns_add_u32 s53, s53, s40\ns_lshl_b32 s53, s53, 9")
            A("s_min_u32 s53, s53, L_end - L_pc - 512")
            A("s_add_u32 s96, s96, s53\ns_addc_u32 s97, s97, 0")
            for i in range(8): A(f"s_load_dword s53, s[96:97], {64*i}")
        A("v_and_b32 v13, 3, v11\nv_lshlrev_b32 v13, 2, v13\nv_lshrrev_b32 v14, 2, v11\nv_add_u32 v13, v13, v14    ; rho")
        A(f"v_xor_b32 v{vV+8}, v12, v13\nv_lshlrev_b32 v{vV+8}, 4, v{vV+8}\nv_lshl_add_u32 v{vV+8}, v11, 8, v{vV+8}")
        A(f"v_add_u32 v{vV+8}, {LDS_Q}, v{vV+8}")
        for s in range(1, 4): A(f"v_xor_b32 v{vV+8+s}, {64*s}, v{vV+8}")
        A("v_lshlrev_b32 v13, 8, v13\nv_add_u32 v13, s47, v13")
        A("v_xor_b32 v14, v12, v11      ; g ^ m")
        for s in range(4):
            A(f"v_xor_b32 v15, {4*s}, v14\nv_lshl_add_u32 v{vKrd[s]}, v15, 4, v13")
        c = math.log2(math.e) / math.sqrt(128.0)
        A(f"s_mov_b32 s48, 0x{f2u(c):08x}     ; log2(e)/sqrt(128)")
        A(f"v_mov_b32 v{vMp}, 0xff800000")
        A(f"v_mov_b32 v{vL[0]}, 0\nv_mov_b32 v{vL[1]}, 0")
        if enc == 9002: A("s_memrealtime s[98:99]")
    at(win[0] - 1, setup2)
    def qread():
        REQ('q')
        A("s_barrier")
        for h in range(2):
            for s in range(4): A(f"ds_read_b128 {vr(Q(h,s))}, v{vV+8+s} offset:{h*4096}")
    qslot = min(max(RK[0], ready(qpos + 1)), RK[1])
    at(qslot, qread)
    px = 1 if pairmap == 'adj' else 128
    def setup3():
        A("s_add_u32 s20, s8, s46\ns_addc_u32 s21, s9, 0\ns_mov_b32 s22, 0x200000\ns_mov_b32 s23, 0x20000")
        A(f"v_lshlrev_b32 v{vVoff}, 4, v0")
        A("s_mov_b32 s28, s10\ns_mov_b32 s29, s11\ns_mov_b32 s30, 0x100000\ns_mov_b32 s31, 0x20000")
        A("s_mov_b32 s32, s14\ns_mov_b32 s33, s15\ns_mov_b32 s34, 0x1000000\ns_mov_b32 s35, 0x20000")
        A("s_mov_b32 s36, s12\ns_mov_b32 s37, s13\ns_mov_b32 s38, 256\ns_mov_b32 s39, 0x20000")
        A("s_mov_b32 s49, 0x05040100\ns_mov_b32 s50, 0x07060302")
        if boost:
            tab = sum(int(boost[c]) << (2 * c) for c in range(4))
            A("s_getreg_b32 s88, hwreg(HW_REG_XCC_ID, 0, 1)\ns_lshl_b32 s88, s88, 2")
            A("s_lshr_b32 s90, s2, 3\ns_xor_b32 s90, s90, s2\ns_and_b32 s90, s90, 1\ns_lshl_b32 s90, s90, 1\ns_add_u32 s88, s88, s90")
            A(f"s_lshr_b32 s88, {tab}, s88\ns_and_b32 s88, s88, 3")
            A("s_mov_b32 s90, s88\ns_mov_b32 s91, 0\ns_mov_b64 vcc, s[90:91]")
    def setup4():
        A("s_lshl_b32 s55, s2, 2\ns_add_u32 s55, s55, s40")
        A(f"s_xor_b32 s56, s55, {px*4}")
        A(f"s_mul_i32 s63, s55, {SLOT}")
        A(f"s_mul_i32 s57, s56, {SLOT}")
        A(f"s_add_u32 s58, s57, 4096\ns_add_u32 s89, s63, 4096")
        if fb: A("s_and_b32 s59, s41, 3\ns_lshl_b32 s59, s59, 3\ns_lshl_b32 s60, 1, s59\ns_and_b32 s61, s41, 0x7c")
        else: A("s_and_b32 s59, s41, 1\ns_lshl_b32 s59, s59, 4\ns_lshl_b32 s60, 1, s59\ns_lshr_b32 s61, s41, 1\ns_lshl_b32 s61, s61, 2")
        if fb:
            A("s_and_b32 s42, s2, 7\ns_lshl_b32 s42, s42, 4\ns_lshr_b32 s43, s2, 4\ns_add_u32 s42, s42, s43\ns_add_u32 s42, s42, 128")
            A("s_lshr_b32 s43, s2, 3\ns_and_b32 s43, s43, 1\ns_or_b32 s43, s43, s40\ns_cmp_eq_u32 s43, 0\ns_cselect_b32 s42, s42, 0x1000")
            A(f"v_lshlrev_b32 v{vFB}, 1, v0")
            if xt:
                tab = sum(int(xt[i], 16) << (4 * i) for i in range(8))
                A(f"s_getreg_b32 s43, hwreg(HW_REG_XCC_ID, 0, 3)\ns_lshl_b32 s43, s43, 2\ns_lshr_b32 s43, 0x{tab:08x}, s43\ns_and_b32 s43, s43, 15")
            elif oddadd: A(f"s_getreg_b32 s43, hwreg(HW_REG_XCC_ID, 0, 1)\ns_mul_i32 s43, s43, {oddadd}")
        A(f"v_mov_b32 v{vTmp}, 0\nv_lshlrev_b32 v{vTmp+1}, 3, v0")
        A(f"s_lshl_b32 s92, s56, 7\ns_add_u32 s92, s92, {WS_A}")
        A(f"s_lshl_b32 s93, s55, 7\ns_add_u32 s93, s93, {WS_A}")
        if not sflag:
            VM(f"buffer_load_dword v{vV}, v{vTmp}, {sWs}, s92 offen {fflags}", 'f0')
            VM(f"buffer_load_dword v{vV+1}, v{vTmp}, {sWs}, s93 offen {fflags}", 'f0')
    def touches():
        VM(f"buffer_load_dword v{vV+2}, v{vTmp}, {sV}, s45 offen {flags}", 'x')
        VM(f"buffer_load_dword v{vV+2}, v{vTmp}, {sOut}, s62 offen nt", 'x')
        VM(f"buffer_load_dword v{vV+2}, v{vTmp}, {sWs}, s89 offen offset:768 nt", 'x')
    at(RK[0] + 2, setup3)
    at(RK[0] + 3, setup4)
    if touch: at(touch, touches)
    vPoll = vQoff
    if fb:
        def fb_io(c):
            def f():
                A(f"v_mov_b32 v{vFB+1}, {c}")
                A("s_mov_b64 exec, 1")
                VM(f"buffer_store_byte v{vFB+1}, v{vTmp}, {sDbg}, s42 offen {fbst}", 'fbs')
                A("s_mov_b64 exec, -1")
                VM(f"buffer_load_ushort v{vQoff}, v{vFB}, {sDbg}, 0 offen offset:128 {fbfl}", 'fbl')
            return f
        def fb_use(c):
            def f():
                REQ('fbl')
                A(f"v_and_b32 v{vFB+1}, 0xff, v{vQoff}\nv_lshrrev_b32 v{vQoff}, 8, v{vQoff}")
                A(f"v_cmp_le_u32 vcc, {c}, v{vFB+1}\nv_cmp_le_u32 s[90:91], {c}, v{vQoff}")
                A("s_bcnt1_i32_b64 s88, vcc\ns_bcnt1_i32_b64 s90, s[90:91]\ns_add_u32 s90, s90, s88")
                if oddadd or xt: A("s_add_u32 s90, s90, s43")
                if stamp: A(f"s_lshl_b32 s83, s83, 5\ns_or_b32 s83, s83, s90")
                A(f"s_cmp_ge_u32 s90, {t2}\ns_cselect_b32 s88, 2, 0")
                if t0 >= 0: A(f"s_cmp_le_u32 s90, {t0}\ns_cselect_b32 s88, 1, s88")
                A(f"s_cmp_ge_u32 s90, {t1}\ns_cselect_b64 vcc, -1, 0")
            return f
        c = 1
        for k in range((fb0 or fb) + 2, 2 * NS - x2 - 8, fb):
            at(k, fb_io(c)); at(k + 8, fb_use(c)); c += 1
    def flag0():
        REQ('f0')
        A(f"v_readfirstlane_b32 s94, v{vV}\nv_readfirstlane_b32 s95, v{vV+1}\ns_nop 1\ns_add_u32 s95, s95, 1")
    if not sflag: at(RK[0] + 3 + 16, flag0)
    else:
        at(NS + 42, lambda: A("s_load_dword s94, s[14:15], s92 glc\ns_load_dword s95, s[14:15], s93 glc"))
        at(NS + 90, lambda: A("s_waitcnt lgkmcnt(0)\ns_add_u32 s95, s95, 1"))
    def poll(track):
        t = f"buffer_load_dword v{vPoll}, v{vTmp}, {sWs}, s92 offen sc1"
        if track: VM(t, 'poll')
        else: A(t)
    def pollres(dst):
        A(f"v_readfirstlane_b32 {dst}, v{vPoll}")
        A(f"s_xor_b32 {dst}, {dst}, s94")
    def cntres(dst):
        A(f"v_readfirstlane_b32 {dst}, v{vPoll}")
        A(f"s_lshr_b32 {dst}, {dst}, s59\ns_and_b32 {dst}, {dst}, 0xff")
    if cut != 1: at(2 * NS - P1, lambda: poll(True))
    def kread(t, T):
        def f():
            n = 2 * t + T
            REQ(('ld', 4 * n + 3))
            for s in range(4):
                A(f"ds_read_b128 {vr(KF(T,s))}, v{vKrd[s]} offset:{(n%4)*4096}")
        return f
    def kmma(t, T, extra=None):
        def f():
            A("s_waitcnt lgkmcnt(0)")
            b = t & 1; k = 0
            for s in range(4):
                for h in range(2):
                    cin = '0' if s == 0 else vr(S(b, h, T))
                    A(f"v_mfma_f32_16x16x32_bf16 {vr(S(b,h,T))}, {vr(KF(T,s))}, {vr(Q(h,s))}, {cin}")
                    if extra and k < len(extra) and (s * 2 + h) % 2 == 1: A(extra[k]); k += 1
        return f
    def smax(t):
        def f():
            b = t & 1; tt = [vT0, vT1]
            for h in range(2): A(f"v_max3_f32 v{tt[h]}, v{S(b,h,0,0)}, v{S(b,h,0,1)}, v{S(b,h,0,2)}")
            for h in range(2): A(f"v_max3_f32 v{tt[h]}, v{tt[h]}, v{S(b,h,0,3)}, v{S(b,h,1,0)}")
            for h in range(2): A(f"v_max3_f32 v{tt[h]}, v{tt[h]}, v{S(b,h,1,1)}, v{S(b,h,1,2)}")
            for h in range(2): A(f"v_max_f32 v{tt[h]}, v{tt[h]}, v{S(b,h,1,3)}")
            A(f"v_permlane32_swap_b32 v{vT0}, v{vT1}")
            A(f"v_max_f32 v{vT0}, v{vT0}, v{vT1}")
            A(f"v_mov_b32 v{vT1}, v{vT0}")
            A(f"v_permlane16_swap_b32 v{vT0}, v{vT1}")
            A(f"v_max_f32 v{vT0}, v{vT0}, v{vT1}")
            A(f"v_mul_f32 v{vT0}, s48, v{vT0}")
            A(f"v_max_f32 v{vM[0]}, v{vMp}, v{vT0}")
            A(f"v_sub_f32 v{vT1}, v{vMp}, v{vM[0]}")
            A(f"v_exp_f32 v{vAl+t}, v{vT1}")
            A(f"v_mov_b32 v{vMp}, v{vM[0]}")
            A(f"v_mov_b32 v{vM[1]}, v{vM[0]}")
            A(f"v_mov_b32 v{vA[0]}, v{vAl+t}")
            A(f"v_mov_b32 v{vA[1]}, v{vAl+t}")
            A(f"v_permlane32_swap_b32 v{vM[0]}, v{vM[1]}")
            A(f"v_permlane32_swap_b32 v{vA[0]}, v{vA[1]}")
        return f
    def sregs(b): return [S(b, h, T, r) for h in range(2) for T in range(2) for r in range(4)]
    def sfma(t):
        def f():
            b = t & 1
            for i, r in enumerate(sregs(b)): A(f"v_fma_f32 v{r}, v{r}, s48, -v{vM[i>>3]}")
            for r in sregs(b)[:4]: A(f"v_exp_f32 v{r}, v{r}")
        return f
    def sexp(t, lo, hi):
        def f():
            for r in sregs(t & 1)[lo:hi]: A(f"v_exp_f32 v{r}, v{r}")
        return f
    def spack(t):
        def f():
            b = t & 1
            for h in range(2):
                for u in range(4):
                    T, x = u >> 1, u & 1
                    A(f"v_cvt_pk_bf16_f32 v{P(h,u)}, v{S(b,h,T,2*x)}, v{S(b,h,T,2*x+1)}")
            for h in range(2):
                for u in range(4): A(f"v_accvgpr_write_b32 a{aP(t,h,u)}, v{P(h,u)}")
        return f
    def lsum(t):
        def f():
            b = t & 1
            for h in range(2): A(f"v_fma_f32 v{vL[h]}, v{vL[h]}, v{vA[h]}, v{S(b,h,0,0)}")
            for idx in range(1, 8):
                for h in range(2): A(f"v_add_f32 v{vL[h]}, v{vL[h]}, v{S(b,h,idx>>2,idx&3)}")
        return f
    for t in range(NT):
        a, b_ = RK[2 * t], RK[2 * t + 1]
        assert b_ >= a + 2
        if t > 0: assert RK[2 * t - 1] + 3 < a + 1 < RK[2 * t - 1] + 6 or (RK[2*t-1] + 3, a + 1)
        assert (a + 1 < 4 * (2 * t + 4) or 2 * t + 4 >= 2 * NT) and (b_ + 1 < 4 * (2 * t + 1 + 4) or 2 * t + 5 >= 2 * NT)
        at(a, kread(t, 0))
        ex = [f"v_exp_f32 v{r}, v{r}" for r in sregs((t - 1) & 1)[12:16]] if t > 0 else None
        at(a + 1 if t > 0 else min(max(a + 1, qslot + 1), RK[1]), kmma(t, 0, ex))
        at(b_, kread(t, 1))
        at(b_ + 1, kmma(t, 1))
        at(b_ + 2, smax(t))
        at(b_ + 3, sfma(t))
        at(b_ + 4, sexp(t, 4, 12))
        nxt = RK[2 * t + 2] + 1 if t < NT - 1 else b_ + 5
        assert nxt > b_ + 3
        if t == NT - 1: at(b_ + 5, sexp(t, 12, 16))
        at(max(nxt, b_ + 4) + 1, spack(t))
        at(max(nxt, b_ + 4) + 2, lsum(t))
        if t < NT - 1: assert max(nxt, b_ + 4) + 2 <= RK[2 * t + 3] + 1
    kdone = RK[2 * NT - 1] + 7
    def perm(t, j, u):
        T, x, w = u >> 1, u & 1, j >> 1
        n = 2 * t + T
        REQ(('ld', NS + 4 * n + 2 * x + 1))
        A(f"v_perm_b32 v{VT(j,u)}, v{Vb(n,2*x+1,w)}, v{Vb(n,2*x,w)}, {'s49' if j%2==0 else 's50'}")
    def v1(t, i):
        def f():
            if t > 0:
                if i == 0:
                    A(f"v_mov_b32 v{vA[0]}, v{vAl+t}\nv_mov_b32 v{vA[1]}, v{vAl+t}")
                    A(f"v_permlane32_swap_b32 v{vA[0]}, v{vA[1]}")
                for j in (2 * i, 2 * i + 1):
                    for h in range(2):
                        for r in (0, 2):
                            A(f"v_pk_mul_f32 {vr(O(h,j,r),2)}, {vr(O(h,j,r),2)}, {vr(vA[h],2)} op_sel_hi:[1,0]")
            for j in (2 * i, 2 * i + 1):
                for u in (0, 1): perm(t, j, u)
        return f
    def pv(t, j):
        for h in range(2):
            cin = '0' if t == 0 else vr(O(h, j))
            A(f"v_mfma_f32_16x16x32_bf16 {vr(O(h,j))}, {vr(VT(j))}, {ar(aP(t,h))}, {cin}")
    def v2(t, i):
        def f():
            for j in (2 * i, 2 * i + 1):
                for u in (2, 3): perm(t, j, u)
            for j in (2 * i, 2 * i + 1): pv(t, j)
        return f
    vY = 24
    def mbox_load(so_d, so_s, track=False):
        E = (lambda x: VM(x, 'y')) if track else A
        E(f"buffer_load_dwordx2 v[{vY+16}:{vY+17}], v{vTmp+1}, {sWs}, {so_s} offen sc1")
        for i in range(4): E(f"buffer_load_dwordx4 {vr(vY+4*i)}, v{vVoff}, {sWs}, {so_d} offen offset:{i*1024} sc1")
    def owrite(j):
        for h in range(2): A(f"ds_write_b128 v{1 if j < 4 else 2}, {vr(O(h,j))} offset:{(h*8+j)*1024}")
    def v2last(t):
        def f():
            for j in range(8): perm(t, j, 2)
            perm(t, 0, 3); perm(t, 1, 3)
            if cut != 1:
                REQ('poll')
                pollres('s90')
                if force in (1, 2, 3, 5): A("s_mov_b32 s90, 0\ns_cmp_lg_u32 s90, 0")
                if force == 4: A("s_bitcmp1_b32 s40, 0\ns_cselect_b32 s90, 0, s90\ns_cmp_lg_u32 s90, 0")
                A("s_cbranch_scc0 L_nos1")
                mbox_load('s57', 's58')
                if bprime:
                    A("s_branch L_s1\nL_nos1:")
                    poll(False)
                    A("L_s1:")
                else: A(f"L_nos1:")
            for j in range(8):
                pv(t, j)
                if j + 2 < 8: perm(t, j + 2, 3)
                if j >= 3 and cut != 1: owrite(j - 3)
            if cut != 1:
                for j in range(5, 8): owrite(j)
        return f
    def stats():
        A(f"v_permlane32_swap_b32 v{vL[0]}, v{vL[1]}")
        A(f"v_add_f32 v{vT0}, v{vL[0]}, v{vL[1]}")
        A(f"v_mov_b32 v{vT1}, v{vT0}")
        A(f"v_permlane16_swap_b32 v{vT0}, v{vT1}")
        A(f"v_add_f32 v{vT0}, v{vT0}, v{vT1}")
        A(f"s_lshl_b32 s46, s40, 9\ns_add_u32 s46, s46, {LDS_ST}")
        A(f"v_lshl_add_u32 v{vT1}, v0, 3, s46")
        A(f"ds_write_b64 v{vT1}, v[{vMp}:{vMp+1}]")
        A(f"v_add_u32 v1, s47, v{vVoff}")
        A(f"v_xor_b32 v2, 0x80, v1")
        A("s_lshr_b32 s53, s40, 1       ; h\ns_and_b32 s54, s40, 1")
        A("v_and_b32 v6, 7, v0          ; q'\nv_bfe_u32 v7, v0, 3, 1      ; jh\nv_lshrrev_b32 v8, 4, v0     ; g")
        A("s_lshl_b32 s46, s54, 3\nv_add_u32 v5, s46, v6       ; q")
        A(f"s_lshl_b32 s46, s53, 8\ns_add_u32 s46, s46, {LDS_ST}")
        A(f"v_lshl_add_u32 v3, v5, 3, s46")
        A("v_lshlrev_b32 v4, 3, v7\nv_xor_b32 v4, v4, v5\nv_lshlrev_b32 v4, 4, v4      ; (q ^ 8jh)*16")
        A("v_lshl_add_u32 v4, v8, 8, v4\nv_lshl_add_u32 v4, v7, 12, v4")
        A("s_lshl_b32 s46, s53, 13\nv_add_u32 v4, s46, v4")
        A(f"s_mul_i32 s46, s40, 2176\ns_add_u32 s46, s46, {LDS_BN}")
        A("v_mul_u32_u24 v5, 272, v6\nv_lshl_add_u32 v5, v8, 6, v5\nv_lshl_add_u32 v5, v7, 3, v5\nv_add_u32 v5, s46, v5")
        A("v_mul_u32_u24 v6, 272, v8\nv_and_b32 v7, 15, v0\nv_lshl_add_u32 v6, v7, 4, v6\nv_add_u32 v6, s46, v6")
        A(f"s_lshl_b32 s46, s40, 2\ns_add_u32 s46, s46, {LDS_FL}\nv_mov_b32 v7, s46\nv_mov_b32 v8, {LDS_FL}")
        A(f"ds_write_b32 v7, v{vTmp}")
    at(RV[3] + 1, stats)
    assert RV[0] > RK[2 * NT - 1] + 1
    prev = 0
    for t in range(NT):
        a = max(RV[2 * t], prev + 1)
        for i in range(4): at(a + i, v1(t, i))
        b_ = max(RV[2 * t + 1], a + 4)
        if t == 0: assert b_ > kdone, (b_, kdone)
        if t == 1: assert a > kdone
        assert a + 3 < NS + 4 * (2 * t + RING) and b_ + 3 < NS + 4 * (2 * t + 1 + RING), (t, a, b_)
        if t < NT - 1:
            for i in range(4): at(b_ + i, v2(t, i))
        else: at(b_, v2last(t))
        prev = b_ + 3
    last = max(work)
    for k in range(last + 1):
        if k < 2 * NS:
            n, i = (k % NS) // 4, k % 4
            kk = k % NS
            goff = lambda x: (x // csz) * csz * 8192 + (x % csz) * 1024 - (x % 4) * 1024
            if kk > 0 and goff(kk) != goff(kk - 1):
                A(f"s_add_u32 {'s44' if k < NS else 's45'}, {'s44' if k < NS else 's45'}, {goff(kk) - goff(kk - 1)}")
            if k < NS and i == 0 and n > 0: A(f"s_add_u32 m0, s47, {(n%4)*4096}")
            if k >= win[k]: REQ(('ld', k - win[k]))
            if fb and t0 >= 0 and 32 <= k < 2 * NS - x2 and k % pc == rc and k not in skip:
                idx = len(vm) - 1 - vm[::-1].index(('ld', k - win[k] + 1))
                A(f"s_bitcmp1_b32 s88, 0\ns_cbranch_scc0 L_ng{k}\ns_waitcnt vmcnt({len(vm) - idx - 1})\nL_ng{k}:")
            if k in skip:
                idx = len(vm) - 1 - vm[::-1].index(('ld', k - win[k] + 1))
                if idx >= st['done']:
                    if skip[k] == 'a': A(f"s_cbranch_vccnz L_sk{k}")
                    else: A(f"s_bitcmp1_b32 s88, 1\ns_cbranch_scc1 L_sk{k}")
                    A(f"s_waitcnt vmcnt({len(vm) - idx - 1})\nL_sk{k}:")
            if k < NS: VM(f"buffer_load_dwordx4 v{vKld[i]}, {sK}, s44 offen offset:{i*1024} {flags} lds", ('ld', k))
            else: VM(f"buffer_load_dwordx4 {vr(Vb(n,i))}, v{vVoff}, {sV}, s45 offen offset:{i*1024} {flags}", ('ld', k))
        if stamp and k == NS: STAMP(1)
        if enc >= 0 and k == enc: A("s_memrealtime s[98:99]")
        if enca >= 0 and k == enca: A("s_memrealtime s[96:97]")
        for f in work.get(k, []):
            if nocomp == 1 and f not in (setup2, setup3, setup4, qload, stats): continue
            if nocomp == 2 and f not in (setup2, setup3, setup4, qload, stats) and k >= RV[0] + 8: continue
            if nocomp == 3 and f not in (setup2, setup3, setup4, qload, stats) and k < RV[0]: continue
            f()
    if nocomp: A("s_waitcnt vmcnt(0)")
    STAMP(2)
    if enc == 9999: A("s_memrealtime s[98:99]")
    if enca == 9999: A("s_memrealtime s[96:97]")
    if stamp: A("s_mov_b32 s79, s83\ns_memtime s[82:83]")
    if cut == 1: A("s_branch L_fin")
    A("s_waitcnt lgkmcnt(0)\ns_barrier")
    vSt = 42; vX = 160; vMx = 50; vLs = 51; vF = 52; vAcc = 60
    if not bprime:
        A("s_cmp_lg_u32 s90, 0\ns_cbranch_scc1 L_nob")
        poll(False)
        A("L_nob:")
    for w in range(4): A(f"ds_read_b64 v[{vSt+2*w}:{vSt+2*w+1}], v3 offset:{w*512}")
    for w in range(4):
        for i in range(4): A(f"ds_read_b128 {vr(vX+(w*4+i)*4)}, v4 offset:{w*16384+i*1024}")
    if bprime:
        A("s_cmp_lg_u32 s90, 0\ns_cbranch_scc1 L_nob\ns_waitcnt vmcnt(0)")
        pollres('s90')
        if force in (2, 3, 5): A("s_mov_b32 s90, 0\ns_cmp_lg_u32 s90, 0")
        A("s_cbranch_scc0 L_pb")
        mbox_load('s57', 's58')
        A("s_branch L_nob\nL_pb:")
        poll(False)
        A("L_nob:")
    A("s_waitcnt lgkmcnt(15)")
    A(f"v_max3_f32 v{vMx}, v{vSt}, v{vSt+2}, v{vSt+4}")
    A(f"v_max_f32 v{vMx}, v{vMx}, v{vSt+6}")
    for w in range(4): A(f"v_sub_f32 v{vF+2*w}, v{vSt+2*w}, v{vMx}")
    for w in range(4): A(f"v_exp_f32 v{vF+2*w}, v{vF+2*w}")
    A(f"v_mul_f32 v{vLs}, v{vF}, v{vSt+1}")
    for w in range(1, 4): A(f"v_fmac_f32 v{vLs}, v{vF+2*w}, v{vSt+2*w+1}")
    A("s_waitcnt lgkmcnt(12)")
    for i in range(0, 16, 2): A(f"v_pk_mul_f32 {vr(vAcc+i,2)}, {vr(vX+i,2)}, {vr(vF,2)} op_sel_hi:[1,0]")
    for w in range(1, 4):
        A(f"s_waitcnt lgkmcnt({12-4*w})")
        for i in range(0, 16, 2): A(f"v_pk_fma_f32 {vr(vAcc+i,2)}, {vr(vX+w*16+i,2)}, {vr(vF+2*w,2)}, {vr(vAcc+i,2)} op_sel_hi:[1,0,1]")
    STAMP(3)
    if enc == 9003: A("s_memrealtime s[98:99]")
    if cut == 2: A("s_branch L_comb")
    if cut == 3: A("s_branch L_fin")
    A("s_cmp_lg_u32 s90, 0\ns_cbranch_scc1 L_wait")
    for i in range(4):
        A(f"buffer_store_dwordx4 {vr(vAcc+4*i)}, v{vVoff}, {sWs}, s63 offen offset:{i*1024} sc1")
    A(f"buffer_store_dwordx2 v[{vMx}:{vMx+1}], v{vTmp+1}, {sWs}, s89 offen sc1")
    A("s_waitcnt vmcnt(5)")
    pollres('s90')
    if force in (2, 5): A("s_mov_b32 s90, 0\ns_cmp_lg_u32 s90, 0")
    if force == 3: A("s_bitcmp1_b32 s40, 1\ns_cselect_b32 s90, 0, s90\ns_cmp_lg_u32 s90, 0")
    A("s_cbranch_scc1 L_load")
    poll(False)
    A(f"s_lshl_b32 s91, 2, s40\nv_mov_b32 v76, s95\nv_mov_b32 v77, s91")
    A("s_waitcnt vmcnt(0)")
    STAMP(4)
    pollres('s90')
    if force == 2: A("s_mov_b32 s90, 0\ns_cmp_lg_u32 s90, 0")
    if force == 3: A("s_bitcmp1_b32 s40, 1\ns_cselect_b32 s90, 0, s90\ns_cmp_lg_u32 s90, 0")
    A("s_cbranch_scc1 L_load")
    A("s_mov_b64 exec, 1")
    A(f"buffer_store_dword v76, v{vTmp}, {sWs}, s93 offen sc1")
    A("s_mov_b64 exec, -1")
    A("ds_write_b32 v7, v77")
    A("s_waitcnt lgkmcnt(0)\ns_barrier")
    A("ds_read_b128 v[76:79], v8\ns_waitcnt lgkmcnt(0)")
    A("v_or3_b32 v76, v76, v77, v78\nv_or_b32 v76, v76, v79\nv_readfirstlane_b32 s90, v76")
    A("s_ff1_i32_b32 s46, s90\ns_sub_u32 s46, s46, 1\ns_cmp_lg_u32 s46, s40\ns_cbranch_scc1 L_noatomic")
    A(f"s_or_b32 s90, s90, 1\ns_lshl_b32 s90, s90, s59\nv_mov_b32 v{vPoll}, s90")
    A("s_mov_b64 exec, 1")
    A(f"buffer_atomic_add v{vPoll}, v{vTmp}, {sDbg}, s61 offen sc0")
    A("s_waitcnt vmcnt(0)")
    A(f"ds_write_b32 v8, v{vPoll} offset:32")
    A("s_waitcnt lgkmcnt(0)")
    A("s_mov_b64 exec, -1")
    A("L_noatomic:\ns_barrier")
    A(f"ds_read_b32 v{vPoll}, v8 offset:32\ns_waitcnt lgkmcnt(0)")
    STAMP(5)
    cntres('s90')
    A("s_and_b32 s90, s90, s91\ns_cbranch_scc0 L_fin")
    A("L_load:")
    mbox_load('s57', 's58')
    A("L_wait:\ns_waitcnt vmcnt(0)")
    A("L_comb:\ns_nop 1")
    A(f"v_max_f32 v12, v{vMx}, v{vY+16}")
    A(f"v_sub_f32 v14, v{vMx}, v12\nv_sub_f32 v16, v{vY+16}, v12")
    A("v_exp_f32 v14, v14\nv_exp_f32 v16, v16")
    A(f"v_mul_f32 v12, v14, v{vLs}\nv_mul_f32 v13, v16, v{vY+17}\nv_add_f32 v12, v12, v13")
    A("v_rcp_f32 v12, v12")
    A("v_mul_f32 v14, v14, v12\nv_mul_f32 v16, v16, v12")
    for i in range(0, 16, 2): A(f"v_pk_mul_f32 {vr(vAcc+i,2)}, {vr(vAcc+i,2)}, v[14:15] op_sel_hi:[1,0]")
    for i in range(0, 16, 2): A(f"v_pk_mul_f32 {vr(vY+i,2)}, {vr(vY+i,2)}, v[16:17] op_sel_hi:[1,0]")
    for i in range(0, 16, 2): A(f"v_pk_add_f32 {vr(vAcc+i,2)}, {vr(vAcc+i,2)}, {vr(vY+i,2)}")
    for r in range(4):
        A(f"v_cvt_pk_bf16_f32 v{80+2*r}, v{vAcc+0*4+r}, v{vAcc+1*4+r}")
        A(f"v_cvt_pk_bf16_f32 v{81+2*r}, v{vAcc+2*4+r}, v{vAcc+3*4+r}")
        A(f"ds_write_b64 v5, v[{80+2*r}:{81+2*r}] offset:{r*16}")
    A("s_waitcnt lgkmcnt(0)")
    A("ds_read_b128 v[88:91], v6\nds_read_b128 v[92:95], v6 offset:1088")
    A("s_waitcnt lgkmcnt(1)")
    A(f"buffer_store_dwordx4 v[88:91], v{vVoff}, {sOut}, s62 offen {oflags}")
    A("s_waitcnt lgkmcnt(0)")
    A(f"buffer_store_dwordx4 v[92:95], v{vVoff}, {sOut}, s62 offen offset:1024 {oflags}")
    if stamp: A("s_waitcnt vmcnt(0)")
    STAMP(6)
    A("L_fin:")
    if fb and clean:
        A("s_cmp_lt_u32 s2, 8\ns_cselect_b32 s42, s42, 0x1000\ns_mov_b64 exec, 1")
        A(f"buffer_store_byte v{vTmp}, v{vTmp}, {sDbg}, s42 offen sc1")
        A("s_mov_b64 exec, -1")
    if enc == 9004: A("s_waitcnt vmcnt(0)\ns_memrealtime s[98:99]")
    if gpad:
        A("s_waitcnt vmcnt(0) lgkmcnt(0)\ns_not_b32 s88, s84\nv_mov_b32 v100, s88\nv_mov_b32 v102, s84\nv_mov_b32 v110, 0\ns_mov_b64 exec, 1")
        A("buffer_atomic_umax v100, v110, s[36:39], 0 offen\nbuffer_atomic_umax v102, v110, s[36:39], 0 offen offset:4\ns_waitcnt vmcnt(0)")
        A(f"L_pad0:\ns_memrealtime s[86:87]\ns_waitcnt lgkmcnt(0)\ns_sub_u32 s86, s86, s84\ns_cmp_lt_u32 s86, {(padto-25)*100}\ns_cbranch_scc1 L_pad0")
        A("buffer_load_dword v101, v110, s[36:39], 0 offen sc1\ns_waitcnt vmcnt(0)\nv_readfirstlane_b32 s84, v101\ns_nop 3\ns_not_b32 s84, s84")
    if enc >= 0:
        A(f"s_waitcnt lgkmcnt(0)\ns_sub_u32 s98, s98, {'s96' if enca >= 0 else 's84'}\ns_add_u32 s84, s84, s98")
    if padto:
        A(f"s_waitcnt vmcnt(0)\nL_pad:\ns_memrealtime s[86:87]\ns_waitcnt lgkmcnt(0)\ns_sub_u32 s86, s86, s84\ns_cmp_lt_u32 s86, {padto*100}\ns_cbranch_scc1 L_pad")
    if stamp:
        A("s_waitcnt lgkmcnt(0)")
        A("s_lshl_b32 s46, s2, 2\ns_add_u32 s46, s46, s40\ns_lshl_b32 s46, s46, 6\ns_add_u32 s46, s46, 0x600000")
        for i in range(7): A(f"v_mov_b32 v{100+i}, s{64+2*i}")
        A("s_getreg_b32 s47, hwreg(HW_REG_XCC_ID)\nv_mov_b32 v107, s47")
        A("s_sub_u32 s82, s82, s80\nv_mov_b32 v108, s82\nv_mov_b32 v109, s79")
        A("v_mov_b32 v110, 0\ns_mov_b64 exec, 1")
        A("buffer_store_dwordx4 v[100:103], v110, s[32:35], s46 offen")
        A("buffer_store_dwordx4 v[104:107], v110, s[32:35], s46 offen offset:16")
        A("buffer_store_dwordx2 v[108:109], v110, s[32:35], s46 offen offset:32")
    A("L_end:\ns_endpgm")
    body, added = fix(o)
    head = HEADER + f"; @launch grid=({NWG},1,1) block=({NW*64},1,1) lds={lds}\n" + \
        f'.amdgcn_target "amdgcn-amd-amdhsa--gfx950"\n.text\n.globl {KN}\n.p2align 8\n.type {KN},@function\n{KN}:\n'
    tail = f"""
.section .rodata,"a"
.p2align 6
.amdhsa_kernel {KN}
  .amdhsa_next_free_vgpr {nv + 256}
  .amdhsa_next_free_sgpr 100
  .amdhsa_accum_offset {nv}
  .amdhsa_group_segment_fixed_size 0
  .amdhsa_kernarg_size 48
  .amdhsa_user_sgpr_count 2
  .amdhsa_user_sgpr_kernarg_segment_ptr 1
  .amdhsa_system_sgpr_workgroup_id_x 1
.end_amdhsa_kernel
"""
    open(path, 'w').write(head + "\n".join(body) + tail)
    print(f"{path}: {len(body)} lines, {added} nop states added", file=sys.stderr)
if __name__ == "__main__":
    kw = {}
    for a in sys.argv[2:]:
        k, v = a.split('=')
        kw[k] = int(v) if (v.lstrip('-').isdigit() and k not in ('wk','wv','boost','xt')) else v.replace('+', ' ')
    gen(sys.argv[1], **kw)
```
